```python
import torch

def _softmax(x, axis=-1):
    return torch.softmax(x, dim=axis)
def _gelu(x):
    return torch.nn.functional.gelu(x, approximate="tanh")
def _silu(x):
    return torch.nn.functional.silu(x)
def _sigmoid(x):
    return torch.sigmoid(x)
def _layernorm(x, axis=-1, eps=1e-5):
    m = x.mean(dim=axis, keepdim=True)
    v = x.var(dim=axis, keepdim=True, unbiased=False)
    return (x - m) / torch.sqrt(v + eps)
def _scatter_add(tgt, idx, src, axis=0):
    return tgt.clone().index_add_(axis, idx, src)
def _segment_sum(src, seg, n):
    out = torch.zeros((n,) + src.shape[1:], dtype=src.dtype)
    return out.index_add_(0, seg, src)
def _pad(x, pw):
    flat = tuple(v for pair in reversed(pw) for v in pair)
    return torch.nn.functional.pad(x, flat)

kernel_name = 'interleave_layers__sliding_local_dilated__mixer_token_mlp__prompt'

def setup_inputs():

    _w = (lambda a: (lambda t: t.to(torch.bfloat16) if t.is_floating_point() else t)(torch.as_tensor(a)))
    def _A_setup():
        B, S, D = 1, 2048, 512
        return {
            "x": _w((lambda *s: torch.randn(*s, dtype=torch.bfloat16) * 0.05)(B, S, D)),
            "wqkv": _w((lambda *s: torch.randn(*s, dtype=torch.bfloat16) * 0.05)(D, 3 * D)),
            "wo": _w((lambda *s: torch.randn(*s, dtype=torch.bfloat16) * 0.05)(D, D)),
        }
    _A_in = _A_setup()

    def _B_setup():
        B, S, D, F = 1, 2048, 512, 1792
        return {
            "x": _w((lambda *s: torch.randn(*s, dtype=torch.bfloat16) * 0.05)(B, S, D)),
            "w1": _w((lambda *s: torch.randn(*s, dtype=torch.bfloat16) * 0.8)(S, F) * (S ** -0.5)),
            "b1": _w((lambda *s: torch.randn(*s, dtype=torch.bfloat16) * 0.8)(F) * 0.02),
            "w2": _w((lambda *s: torch.randn(*s, dtype=torch.bfloat16) * 0.8)(F, S) * (F ** -0.5)),
            "b2": _w((lambda *s: torch.randn(*s, dtype=torch.bfloat16) * 0.8)(S) * 0.02),
        }
    _B_in = _B_setup()

    return {
        "A_x": _A_in["x"],
        "A_wqkv": _A_in["wqkv"],
        "A_wo": _A_in["wo"],
        "B_x": _B_in["x"],
        "B_w1": _B_in["w1"],
        "B_b1": _B_in["b1"],
        "B_w2": _B_in["w2"],
        "B_b2": _B_in["b2"],
    }

def reference(A_x, A_wqkv, A_wo, B_x, B_w1, B_b1, B_w2, B_b2):
    def _A_ref(x, wqkv, wo):
        B, S, D = x.shape
        H = 32; Dh = D // H
        W, dil = 8, 2
        qkv = (lambda x, *d: x.permute(*d))((x @ wqkv).reshape(B, S, 3, H, Dh), 2, 0, 3, 1, 4)
        q, k, v = qkv[0], qkv[1], qkv[2]
        scale = Dh ** -0.5
        pos = torch.arange(S)
        off = torch.arange(W) * dil
        idx = pos[:, None] - off[None, :]
        mask = idx >= 0
        idx_c = torch.where(mask, idx, 0).reshape(-1)
        kg = k[:, :, idx_c, :].reshape(B, H, S, W, Dh)
        vg = v[:, :, idx_c, :].reshape(B, H, S, W, Dh)
        logits = torch.einsum("bhsd,bhswd->bhsw", q, kg) * scale
        logits = torch.where(mask[None, None, :, :], logits, -1e9)
        attn = _softmax(logits, axis=-1)
        o = torch.einsum("bhsw,bhswd->bhsd", attn, vg)
        return (lambda x, *d: x.permute(*d))(o, 0, 2, 1, 3).reshape(B, S, D) @ wo

    def _B_ref(x, w1, b1, w2, b2):
        B, S, D = x.shape
        h = _layernorm(x, axis=-1)
        u = torch.einsum("bsd,sf->bdf", h, w1) + b1
        u = _gelu(u)
        y = torch.einsum("bdf,fs->bds", u, w2) + b2
        return (lambda x, *d: x.permute(*d))(y, 0, 2, 1)

    x = A_x
    x = x + _A_ref(_layernorm(x, axis=-1), A_wqkv, A_wo)
    x = x + _B_ref(_layernorm(x, axis=-1), B_w1, B_b1, B_w2, B_b2)
    x = x + _A_ref(_layernorm(x, axis=-1), A_wqkv, A_wo)
    x = x + _B_ref(_layernorm(x, axis=-1), B_w1, B_b1, B_w2, B_b2)
    return x
```

```python
import re

REG_RE = re.compile(r'\b([vas])(\d+)\b|\b([vas])\[(\d+):(\d+)\]|\b(vcc|exec|m0|scc)\b')

def regs_of(op):
    out = []
    for m in REG_RE.finditer(op):
        if m.group(1):
            out.append((m.group(1), int(m.group(2))))
        elif m.group(3):
            out += [(m.group(3), i) for i in range(int(m.group(4)), int(m.group(5)) + 1)]
        else:
            out.append((m.group(6), 0))
    return out

TRANS = ('v_exp_f32', 'v_log_f32', 'v_rcp_f32', 'v_rsq_f32', 'v_sqrt_f32', 'v_sin_f32', 'v_cos_f32')

def split_ops(s):
    out, depth, cur = [], 0, ''
    for ch in s:
        if ch == '[': depth += 1
        if ch == ']': depth -= 1
        if ch == ',' and depth == 0:
            out.append(cur.strip()); cur = ''
        else:
            cur += ch
    if cur.strip(): out.append(cur.strip())
    return out

class Ins:
    __slots__ = ('text', 'mn', 'cls', 'wr', 'rd', 'srcc', 'ab', 'wide_store', 'dpp', 'states')

def classify(text):
    t = text.split(';')[0].strip()
    parts = t.split(None, 1)
    mn = parts[0]
    ops = split_ops(parts[1]) if len(parts) > 1 else []
    I = Ins(); I.text = text; I.mn = mn; I.wr = []; I.rd = []; I.srcc = []; I.ab = []; I.wide_store = []; I.dpp = False; I.states = 1
    if mn == 's_nop':
        I.cls = 'nop'; I.states = int(ops[0], 0) + 1
    elif mn.startswith('v_mfma'):
        I.cls = 'mfma'; I.wr = regs_of(ops[0]); I.ab = regs_of(ops[1]) + regs_of(ops[2]); I.srcc = regs_of(ops[3]); I.rd = I.ab + I.srcc
    elif mn.startswith('v_'):
        I.cls = 'valu'
        if mn.startswith('v_cmp'):
            I.wr = regs_of(ops[0]); I.rd = sum((regs_of(o) for o in ops[1:]), [])
        elif mn.startswith('v_permlane') or mn.startswith('v_swap'):
            I.wr = regs_of(ops[0]) + regs_of(ops[1]); I.rd = list(I.wr)
        elif mn in ('v_add_co_u32', 'v_sub_co_u32', 'v_addc_co_u32'):
            I.wr = regs_of(ops[0]) + regs_of(ops[1]); I.rd = sum((regs_of(o) for o in ops[2:]), [])
        else:
            I.wr = regs_of(ops[0]); I.rd = sum((regs_of(o) for o in ops[1:]), [])
            if mn.startswith('v_fmac') or mn.startswith('v_dot2c') or mn.startswith('v_writelane') or mn.startswith('v_pk_fmac'):
                I.rd += I.wr
        I.dpp = '_dpp' in mn or 'row_' in t or 'quad_perm' in t
    elif mn.startswith('buffer_') or mn.startswith('global_'):
        I.cls = 'vmem'
        if mn in ('buffer_inv', 'buffer_wbl2'):
            pass
        elif 'load' in mn and ' lds' in (' ' + t + ' ').replace(',', ' ') and mn.startswith('buffer_') and len(ops) == 3:
            I.rd = sum((regs_of(o) for o in ops), []) + [('m0', 0)]
        elif 'load' in mn:
            I.wr = regs_of(ops[0]); I.rd = sum((regs_of(o) for o in ops[1:]), [])
        else:
            I.rd = sum((regs_of(o) for o in ops), [])
            if 'x4' in mn or 'x3' in mn:
                I.wide_store = regs_of(ops[0]) if mn.startswith('buffer_') else regs_of(ops[1])
    elif mn.startswith('ds_'):
        I.cls = 'ds'
        if 'read' in mn or 'permute' in mn or 'swizzle' in mn:
            I.wr = regs_of(ops[0]); I.rd = sum((regs_of(o) for o in ops[1:]), [])
        else:
            I.rd = sum((regs_of(o) for o in ops), [])
    elif mn.startswith('s_load') or mn.startswith('s_memtime') or mn.startswith('s_memrealtime'):
        I.cls = 'smem'; I.wr = regs_of(ops[0]); I.rd = sum((regs_of(o) for o in ops[1:]), [])
    elif mn.startswith('s_'):
        I.cls = 'salu'
        if mn.startswith('s_cmp') or mn.startswith('s_cbranch') or mn in ('s_branch', 's_waitcnt', 's_barrier', 's_endpgm', 's_sleep', 's_setprio'):
            I.rd = sum((regs_of(o) for o in ops), []) if mn.startswith('s_cmp') else []
            if 'vcc' in mn: I.rd = [('vcc', 0)]
        else:
            I.wr = regs_of(ops[0]); I.rd = sum((regs_of(o) for o in ops[1:]), [])
    else:
        raise ValueError('unknown instruction ' + text)
    return I

class Emitter:
    def __init__(self):
        self.lines = []
        self.hist = []
        self.vm = []
        self.lg = []
        self.nlabel = 0
        self.ninstr = 0

    def need(self, I):
        miss = 0
        dist = 0
        rd = set(I.rd); wr = set(I.wr)
        for P in reversed(self.hist):
            req = 0
            pw = set(P.wr)
            if P.cls == 'valu':
                vw = {r for r in pw if r[0] in 'va'}
                sw = {r for r in pw if r[0] in ('s', 'vcc')}
                isdot = P.mn.startswith('v_dot')
                if I.cls == 'mfma' and vw & rd: req = max(req, 3 if isdot else 2)
                if I.cls == 'valu':
                    if I.mn.startswith('v_permlane') and vw & rd: req = max(req, 2)
                    if I.dpp and vw & rd: req = max(req, 2)
                    if I.mn.startswith('v_readlane') or I.mn.startswith('v_readfirstlane'):
                        if vw & rd: req = max(req, 1)
                    if P.mn.replace('_e32', '').replace('_e64', '') in TRANS and vw & rd: req = max(req, 1)
                    if 'sdwa' in P.mn and vw & (rd | wr): req = max(req, 1)
                    if sw & rd:
                        req = max(req, 4 if (I.mn.startswith('v_readlane') or I.mn.startswith('v_writelane')) else 2)
                    if isdot and vw & (rd | wr):
                        if I.mn == P.mn:
                            ops = split_ops(I.text.split(';')[0].split(None, 1)[1])
                            ab = set(regs_of(ops[1]) + regs_of(ops[2]))
                            if vw & ab: req = max(req, 3)
                        else:
                            req = max(req, 3)
                if isdot and I.cls in ('vmem', 'ds') and vw & rd: req = max(req, 3)
                if I.cls == 'vmem' and sw & rd: req = max(req, 5)
                if I.cls in ('salu', 'smem') and sw & rd: req = max(req, 4)
            elif P.cls == 'mfma':
                npass = 8 if '32x32' in P.mn else 4
                big = {4: 8, 8: 12}[npass]; ovl = {4: 6, 8: 10}[npass]; war = {4: 3, 8: 7}[npass]
                if I.cls == 'mfma':
                    if pw & set(I.ab): req = max(req, big)
                    if pw & set(I.srcc):
                        same = (I.srcc == P.wr) and (('32x32' in I.mn) == ('32x32' in P.mn))
                        if not same: req = max(req, ovl)
                    elif pw & wr: req = max(req, ovl)
                elif I.cls in ('valu', 'vmem', 'ds'):
                    if pw & (rd | wr): req = max(req, big)
                    if I.cls == 'valu' and set(P.srcc) & wr: req = max(req, war)
            elif P.cls == 'salu':
                if ('m0', 0) in pw and I.cls == 'vmem' and ('m0', 0) in rd: req = max(req, 1)
            elif P.cls == 'vmem':
                if P.wide_store and set(P.wide_store) & wr: req = max(req, 2)
            miss = max(miss, req - dist)
            dist += P.states
            if dist >= 14: break
        return miss

    def raw(self, text):
        self.lines.append(text)

    def __call__(self, text, tag=None):
        for ln in text.split('\n'):
            ln = ln.strip()
            if not ln: continue
            if ln.startswith(';') or ln.startswith('.'):
                self.lines.append(ln); continue
            if ln.endswith(':'):
                self.lines.append(ln); continue
            I = classify(ln)
            m = self.need(I)
            if m > 0:
                self._push(classify(f's_nop {m-1}'))
            self._push(I)
            if I.cls == 'vmem': self.vm.append(tag)
            if I.cls == 'ds': self.lg.append(tag)

    def _push(self, I):
        self.lines.append('    ' + I.text)
        self.hist.append(I)
        if len(self.hist) > 20: self.hist.pop(0)
        self.ninstr += 1

    def label(self, base='L'):
        self.nlabel += 1
        return f'{base}_{self.nlabel}'

    def fence_hazards(self):
        self('s_nop 7\ns_nop 3')

    def _after(self, lst, tag):
        idx = max(i for i, t in enumerate(lst) if t == tag)
        return len(lst) - 1 - idx

    def wait_vm(self, tag):
        n = self._after(self.vm, tag)
        self(f's_waitcnt vmcnt({min(n, 63)})')

    def wait_lg(self, tag):
        n = self._after(self.lg, tag)
        self(f's_waitcnt lgkmcnt({min(n, 15)})')

    def wait_both(self, vtag, ltag):
        parts = []
        if vtag is not None: parts.append(f'vmcnt({min(self._after(self.vm, vtag), 63)})')
        if ltag is not None: parts.append(f'lgkmcnt({min(self._after(self.lg, ltag), 15)})')
        if parts: self('s_waitcnt ' + ' '.join(parts))

    def text(self):
        return '\n'.join(self.lines) + '\n'
```

```python
import sys, struct, math
sys.path.insert(0, 'gen')
from emit import Emitter

NAME = 'interleave_layers__sliding_local_dilated__mixer_token_mlp__prompt_kernel'
STAMPS = '--stamps' in sys.argv
OUT = [a for a in sys.argv[1:] if not a.startswith('--')][0]
EXP = set(a[2:] for a in sys.argv[1:] if a.startswith('--'))

def f2u(x): return struct.unpack('<I', struct.pack('<f', x))[0]
def hx(x): return '0x%08x' % (x & 0xffffffff)

WS_FLAG = lambda l, ph: 0x10000 * (1 + l * 4 + ph)
WS_STAT = lambda l: 0x100000 + l * 0x40000
WS_O = lambda l: 0x200000 + l * 0x200000
WS_H2 = lambda l: 0x600000 + l * 0x200000
WS_U = lambda l: 0xA00000 + l * 0x200000
WS_X2 = 0xE00000
WS_DBG = 0x2000000
FSTR = 128

SLOT = 4096
NSLOT = 36
SC = NSLOT * SLOT
LDS_BYTES = SC + 16384
assert LDS_BYTES == 163840
EX = SC
ST_R = SC + 10240
ST_N = SC + 10240 + 640
CS_QK = SC + 12288
CS_V = SC + 12288 + 256

X0, WQKV, WO, W1, W2, B1, B2, OUTS, WS = 4, 8, 12, 16, 20, 24, 28, 32, 36
def srd(n): return f's[{n}:{n+3}]'
sTAG, sW, sX, sI, sM0 = 's40', 's41', 's42', 's43', 's44'
sTB, sP, sSB, sDT, sDT3, sFT, sKH, sMH = 's45', 's46', 's47', 's48', 's49', 's50', 's51', 's52'
sBQKV, sBWO, sBW1, sBW2 = 's53', 's54', 's55', 's56'
sT0, sT1, sT2, sT3 = 's60', 's61', 's62', 's63'
sPAR, sCUR0, sCUR1 = 's[64:65]', 's[66:67]', 's[68:69]'
sCNT = 's70'
sC1, sC2, sC3 = 's71', 's72', 's73'

vL, vG, vJ, vL16, vXR = 'v1', 'v2', 'v3', 'v4', 'v5'
vDQ, vDO, vD1, vD2 = 'v6', 'v7', 'v8', 'v9'
vA = list(range(10, 22))
vT0, vT1, vT2, vT3 = 'v22', 'v23', 'v24', 'v25'
vTAG = 'v26'
vL8 = 'v27'
ONES = 28
CARRY = 32
SELP0, SELP1, SELC0, SELC1 = 'v40', 'v41', 'v42', 'v43'
NEG = 44
BIAS = 48
vSTAMP = 'v63'

e = Emitter()
def v(n, w=1): return f'v{n}' if w == 1 else f'v[{n}:{n+w-1}]'
def a(n, w=1): return f'a{n}' if w == 1 else f'a[{n}:{n+w-1}]'

nstamp = [0]
def stamp():
    if not STAMPS: return
    e(f's_memrealtime s[58:59]\ns_waitcnt lgkmcnt(0)\nv_writelane_b32 {vSTAMP}, s58, {nstamp[0]}')
    nstamp[0] += 1

def dma(kind, idx, slot, tag):
    if kind == 'qkv':
        kk, seg = divmod(idx, 3)
        off, base, vo, s = kk * 64 * 3072 + seg * 1024, sBQKV, vDQ, WQKV
    elif kind == 'wo':
        off, base, vo, s = idx * 32 * 1024, sBWO, vDO, WO
    elif kind == 'w1':
        off, base, vo, s = idx * 32 * 3584, sBW1, vD1, W1
    elif kind == 'w2':
        off, base, vo, s = idx * 32 * 4096, sBW2, vD2, W2
    e(f's_add_u32 m0, {sM0}, {slot * SLOT}')
    e(f's_add_u32 {sT3}, {base}, {off}')
    e(f'buffer_load_dwordx4 {vo}, {srd(s)}, {sT3} offen lds', tag)

def stage(kind, idx, reg, tag):
    if kind == 'w1': off, base, vo, s = idx * 32 * 3584, sBW1, vD1, W1
    else: off, base, vo, s = idx * 32 * 4096, sBW2, vD2, W2
    e(f's_add_u32 {sT3}, {base}, {off}')
    e(f'buffer_load_dwordx4 {v(reg, 4)}, {vo}, {srd(s)}, {sT3} offen', tag)

C1 = 2
C2 = (C1 + 32) % 18
def wo_slot(p): return 24 + p if p < 12 else p - 12
def big_slot(c, t, kh): return ((c + t) % 18) * 2 + kh
STG = 128

def dma_big(kind, t0, t1):
    c, nt = (C1, 32) if kind == 'w1' else (C2, 28)
    for t in range(t0, t1):
        for kh in (0, 1):
            dma(kind, kh * nt + t, big_slot(c, t, kh), (kind, t))

def stage_big(kind, t0=18, t1=None):
    nt = 32 if kind == 'w1' else 28
    for t in range(t0, t1 or nt):
        for kh in (0, 1):
            stage(kind, kh * nt + t, STG + ((t - 18) * 2 + kh) * 4, (kind + 's', t))

def publish(flag_base, idx_code):
    e('s_waitcnt vmcnt(0)\ns_barrier')
    L = e.label('pub')
    e(f's_cmp_lg_u32 {sW}, 0\ns_cbranch_scc1 {L}')
    e(idx_code)
    e(f's_mul_i32 {sT0}, {sT0}, {FSTR}\ns_add_u32 {sT0}, {sT0}, {flag_base}')
    e(f'v_mov_b32 {vT0}, 0\ns_mov_b64 exec, 1')
    e(f'buffer_store_dword {vTAG}, {vT0}, {srd(WS)}, {sT0} offen sc1', 'flag')
    e('s_mov_b64 exec, -1')
    e(f'{L}:')

def poll(flag_base, first_code, count):
    L = e.label('poll'); Ld = L + '_d'
    e(f's_cmp_lg_u32 {sW}, 0\ns_cbranch_scc1 {Ld}')
    e(first_code)
    e(f's_mul_i32 {sT0}, {sT0}, {FSTR}\ns_add_u32 {sT0}, {sT0}, {flag_base}')
    if count is None: e(f'v_min_u32 {vT0}, {sT1}, {vL}')
    else: e(f'v_min_u32 {vT0}, {count - 1}, {vL}')
    e(f'v_mul_u32_u24 {vT0}, {FSTR}, {vT0}')
    e(f's_mov_b32 {sCNT}, 30000')
    e(f'{L}:')
    e(f'buffer_load_dword {vT1}, {vT0}, {srd(WS)}, {sT0} offen sc1', 'poll')
    e('s_waitcnt vmcnt(0)')
    e(f'v_cmp_ne_u32 vcc, {vT1}, {vTAG}')
    e(f's_cbranch_vccz {Ld}')
    e(f's_sub_u32 {sCNT}, {sCNT}, 1\ns_cmp_lg_u32 {sCNT}, 0\ns_cbranch_scc1 {L}')
    e(f'{Ld}:')
    e('s_waitcnt vmcnt(0)\ns_barrier')

def prologue():
    e.raw(f'.globl {NAME}\n.p2align 8\n.type {NAME},@function\n{NAME}:')
    e(f's_cmp_lt_u32 s2, 256\ns_cbranch_scc1 L_go\ns_endpgm\nL_go:')
    e('s_load_dwordx16 s[64:79], s[0:1], 0\ns_load_dwordx2 s[80:81], s[0:1], 64\ns_load_dwordx2 s[82:83], s[0:1], 80')
    e(f'v_lshrrev_b32 {vT0}, 6, v0\nv_and_b32 {vL}, 63, v0')
    e(f'v_readfirstlane_b32 {sW}, {vT0}')
    e(f'v_lshrrev_b32 {vG}, 4, {vL}\nv_and_b32 {vJ}, 15, {vL}\nv_lshlrev_b32 {vL16}, 4, {vL}\nv_lshlrev_b32 {vL8}, 3, {vL}')
    e(f'v_lshlrev_b32 {vXR}, 10, {vJ}\nv_lshl_add_u32 {vXR}, {vG}, 4, {vXR}')
    e(f's_and_b32 {sX}, s2, 7\ns_lshr_b32 {sI}, s2, 3\ns_lshl_b32 {sM0}, {sW}, 10')
    e(f's_lshr_b32 {sT0}, {sI}, 4\ns_lshl_b32 {sTB}, {sX}, 1\ns_add_u32 {sTB}, {sTB}, {sT0}\ns_and_b32 {sP}, {sI}, 15')
    e(f's_lshr_b32 {sT0}, {sI}, 3\ns_lshl_b32 {sSB}, {sX}, 2\ns_add_u32 {sSB}, {sSB}, {sT0}\ns_and_b32 {sDT}, {sI}, 7')
    e(f's_and_b32 {sT0}, {sX}, 1\ns_lshl_b32 {sT0}, {sT0}, 2\ns_and_b32 {sDT3}, {sI}, 3\ns_add_u32 {sDT3}, {sDT3}, {sT0}')
    e(f's_lshr_b32 {sT0}, {sX}, 1\ns_mul_i32 {sT0}, {sT0}, 7\ns_lshr_b32 {sFT}, {sI}, 2\ns_add_u32 {sFT}, {sFT}, {sT0}')
    e(f's_min_u32 {sFT}, {sFT}, 27')
    e(f's_lshr_b32 {sKH}, {sW}, 1\ns_and_b32 {sMH}, {sW}, 1')
    e(f's_lshl_b32 {sBQKV}, {sP}, 6\ns_lshl_b32 {sBWO}, {sDT}, 7\ns_lshl_b32 {sBW1}, {sFT}, 7\ns_lshl_b32 {sBW2}, {sSB}, 7')
    e(f'v_lshrrev_b32 {vT0}, 2, {vL}\ns_lshl_b32 {sT0}, {sW}, 4\nv_add_u32 {vT0}, {sT0}, {vT0}\nv_mul_u32_u24 {vDQ}, 3072, {vT0}')
    e(f'v_lshrrev_b32 {vT0}, 5, {vL}\nv_lshlrev_b32 {vT0}, 1, {vT0}\nv_and_b32 {vT1}, 3, {vL}\nv_xor_b32 {vT0}, {vT0}, {vT1}\nv_lshl_add_u32 {vDQ}, {vT0}, 4, {vDQ}')
    e(f'v_lshrrev_b32 {vT0}, 3, {vL}\ns_lshl_b32 {sT0}, {sW}, 3\nv_add_u32 {vT0}, {sT0}, {vT0}')
    e(f'v_and_b32 {vT1}, 7, {vL}\nv_lshlrev_b32 {vT2}, 1, {vG}\nv_xor_b32 {vT1}, {vT1}, {vT2}\nv_lshlrev_b32 {vT1}, 4, {vT1}')
    e(f'v_lshl_add_u32 {vDO}, {vT0}, 10, {vT1}\nv_lshl_add_u32 {vD2}, {vT0}, 12, {vT1}')
    e(f'v_mul_u32_u24 {vD1}, 3584, {vT0}\nv_add_u32 {vD1}, {vD1}, {vT1}')
    for i in range(4): e(f'v_mov_b32 {v(ONES + i)}, 0x3f803f80')
    if STAMPS: e(f'v_mov_b32 {vSTAMP}, 0')
    e('s_waitcnt lgkmcnt(0)')
    e(f's_load_dword {sTAG}, s[82:83], 0')
    for n, src, size in ((X0, 64, 2097152), (WQKV, 66, 1572864), (WO, 68, 524288), (W1, 72, 7340032), (B1, 74, 3584),
                         (W2, 76, 7340032), (B2, 78, 4096), (OUTS, 80, 2097152), (WS, 82, 0x10000000)):
        e(f's_mov_b32 s{n}, s{src}\ns_and_b32 s{n+1}, s{src+1}, 0xffff\ns_mov_b32 s{n+2}, {size}\ns_mov_b32 s{n+3}, 0x20000')

def late_setup():
    e('s_waitcnt lgkmcnt(0)')
    e(f's_mul_i32 {sTAG}, {sTAG}, 1664525\ns_add_u32 {sTAG}, {sTAG}, 1013904223')
    e(f'v_mov_b32 {vTAG}, {sTAG}')
    e(f'v_and_b32 {vT0}, 1, {vJ}\nv_cmp_eq_u32 {sPAR}, 1, {vT0}')
    e(f'v_lshl_add_u32 {vT1}, {vG}, 2, {vT0}')
    e(f'v_cmp_le_u32 {sCUR0}, {vT1}, {vJ}\nv_add_u32 {vT1}, 2, {vT1}\nv_cmp_le_u32 {sCUR1}, {vT1}, {vJ}')
    e(f'v_mov_b32 {vT2}, 0x0c0c0c0c')
    for u, (sc, sp, cur) in enumerate(((SELC0, SELP0, sCUR0), (SELC1, SELP1, sCUR1))):
        lo = 0x0c0c0000 | ((2*u+1) << 8) | (2*u)
        hi = ((2*u+1) << 24) | ((2*u) << 16) | 0x0c0c
        e(f'v_mov_b32 {vT0}, {hx(lo)}\nv_mov_b32 {vT1}, {hx(hi)}\nv_cndmask_b32 {vT0}, {vT0}, {vT1}, {sPAR}')
        e(f'v_cndmask_b32 {sc}, {vT2}, {vT0}, {cur}\nv_cndmask_b32 {sp}, {vT0}, {vT2}, {cur}')
    e(f's_or_b32 {sT0}, {sTB}, {sW}\ns_cmp_eq_u32 {sT0}, 0\ns_cselect_b32 {sT0}, {hx(f2u(-1e30))}, 0')
    for i in range(4): e(f'v_mov_b32 {v(NEG + i)}, {sT0}')

XF = 128
def xf(t, kt): return XF + (t * 16 + kt) * 4
ACC1 = 64
def acc1(t, c): return ACC1 + (t * 6 + c) * 4
HA, HB = 112, 116
SUM0, SQ0, SUM1, SQ1 = 120, 121, 122, 123
XH = 128

def p1_tr(dst, kt, seg, h, avs):
    slot = (kt >> 1) * 3 + seg
    st = slot // 12
    imm = (slot - st * 12) * SLOT + (kt & 1) * 2048 + h * 256
    return f'ds_read_b64_tr_b16 {dst}, v{avs[st]} offset:{imm}'

def ln_stats(vs, vq, vr, vn, t0, double=False):
    e(f'v_mul_f32 {vs}, {hx(f2u(1/512))}, {vs}')
    e(f'v_mul_f32 {vq}, {hx(f2u(1/512))}, {vq}')
    e(f'v_fma_f32 {vq}, -{vs}, {vs}, {vq}')
    e(f'v_max_f32 {vq}, 0, {vq}')
    e(f'v_add_f32 v{t0}, {hx(f2u(1e-5))}, {vq}')
    e(f'v_rsq_f32 {vr}, v{t0}')
    if double:
        e(f'v_mul_f32 v{t0}, {vr}, {vr}')
        e(f'v_mul_f32 v{t0}, v{t0}, {vq}')
        e(f'v_add_f32 v{t0}, {hx(f2u(1e-5))}, v{t0}')
        e(f'v_rsq_f32 v{t0}, v{t0}')
        e(f'v_mul_f32 {vr}, {vr}, v{t0}')
    e(f'v_mul_f32 {vn}, {vs}, {vr}')
    e(f'v_sub_f32 {vn}, 0, {vn}')

def phase1(l):
    first = l == 0
    src = srd(X0) if first else srd(WS)
    sc = '' if first else ' sc1'
    xbase = 0 if first else WS_X2
    def addr_setup():
        e(f'v_lshrrev_b32 {vT0}, 2, {vL}\nv_and_b32 {vT0}, 3, {vT0}\nv_lshl_add_u32 {vT0}, {vG}, 3, {vT0}\nv_lshlrev_b32 {vT0}, 6, {vT0}')
        e(f'v_and_b32 {vT1}, 3, {vL}\nv_lshl_add_u32 {vT0}, {vT1}, 3, {vT0}')
        e(f'v_and_b32 {vT1}, 1, {vG}\nv_lshl_add_u32 v{vA[0]}, {vT1}, 5, {vT0}')
        e(f'v_add_u32 v{vA[1]}, {12*SLOT}, v{vA[0]}')
        e(f'v_xor_b32 v{vA[2]}, 32, v{vA[0]}\nv_xor_b32 v{vA[3]}, 32, v{vA[1]}')
        e(f's_lshl_b32 {sT0}, {sMH}, 5\nv_xor_b32 v{vA[4]}, {sT0}, v{vA[0]}\nv_xor_b32 v{vA[5]}, {sT0}, v{vA[1]}')
        for i in range(64): e(f'v_accvgpr_write_b32 a{XH + i}, {v(ONES)}')
    if not first:
        addr_setup()
        poll(WS_FLAG(0, 3), f's_lshl_b32 {sT0}, {sTB}, 4\ns_sub_u32 {sT0}, {sT0}, 8\ns_max_i32 {sT0}, {sT0}, 0\n'
             f's_cmp_eq_u32 {sTB}, 0\ns_cselect_b32 {sT1}, 15, 23', None)
    stamp()
    e(f's_lshl_b32 {sT0}, {sTB}, 3\ns_lshl_b32 {sT1}, {sW}, 1\ns_add_u32 {sT0}, {sT0}, {sT1}\ns_lshl_b32 {sT0}, {sT0}, 14')
    e(f's_add_u32 {sT0}, {sT0}, {xbase}\ns_add_u32 {sT1}, {sT0}, 16384')
    e(f's_lshl_b32 {sT2}, {sTB}, 3\ns_sub_u32 {sT2}, {sT2}, 1\ns_max_i32 {sT2}, {sT2}, 0\ns_lshl_b32 {sT2}, {sT2}, 14\ns_add_u32 {sT2}, {sT2}, {xbase}')
    for kk in range(8):
        for kt in (2*kk, 2*kk+1):
            for t in (0, 1):
                e(f'buffer_load_dwordx4 {v(xf(t, kt), 4)}, {vXR}, {src}, {(sT0, sT1)[t]} offen offset:{kt*64}{sc}', ('x', kt))
        if first:
            for seg in range(3): dma('qkv', kk*3+seg, kk*3+seg, ('qkv', kk))
    side = []
    def halo_load(kt):
        e(f's_mov_b32 exec_lo, 0xfffefffe\ns_mov_b32 exec_hi, 0xfffefffe')
        e(f'buffer_load_dwordx4 {a(XH + kt*4, 4)}, {vXR}, {src}, {sT2} offen offset:{kt*64}{sc}', 'halo')
        e(f'buffer_load_dwordx4 {a(XH + kt*4 + 4, 4)}, {vXR}, {src}, {sT2} offen offset:{kt*64 + 64}{sc}', 'halo')
        e('s_mov_b64 exec, -1')
    if first:
        addr_setup()
        late_setup()
        for kt in range(0, 16, 2): side.append(lambda kt=kt: halo_load(kt))
        def res_loads():
            e(f's_lshl_b32 {sT0}, {sSB}, 2\ns_add_u32 {sT0}, {sT0}, {sW}\ns_lshl_b32 {sT0}, {sT0}, 14\ns_add_u32 {sT0}, {sT0}, {sBWO}')
            e(f'v_lshlrev_b32 {vT0}, 10, {vJ}\nv_lshl_add_u32 {vT0}, {vG}, 3, {vT0}')
            for ct in range(4):
                e(f'buffer_load_dwordx2 {v(CARRY + 2*ct, 2)}, {vT0}, {srd(X0)}, {sT0} offen offset:{ct*32}', 'res')
        side.append(res_loads)
        for p in range(0, 12, 3): side.append(lambda p=p: [dma('wo', q, wo_slot(q), 'wo') for q in range(p, p+3)])
    else:
        for kt in range(0, 16, 2): halo_load(kt)

    def reads(kt):
        fb = (kt & 1) * 24
        out = []
        for c in range(6):
            seg, ct = c >> 1, c & 1
            for h in (0, 1):
                out.append(p1_tr(a(fb + 4*c + 2*h, 2), kt, seg, h, (vA[2*ct], vA[2*ct+1])))
        return out
    def gate(q):
        if first:
            e.wait_vm(('qkv', 2*q+1)); e('s_barrier')
    gate(0)
    for r in reads(0): e(r, ('f', 0))
    for kt in range(16):
        if kt % 4 == 3 and kt < 15: gate((kt+1)//4)
        e.wait_both(None if 'noactwait' in EXP else ('x', kt), ('f', kt))
        nxt = reads(kt+1) if kt < 15 else []
        dots = []
        for r in range(4):
            for t, (sm, sq) in enumerate(((SUM0, SQ0), (SUM1, SQ1))):
                x = v(xf(t, kt) + r)
                z = kt == 0 and r == 0
                dots.append(f'v_dot2_f32_bf16 v{sm}, {x}, {v(ONES)}, {"0" if z else f"v{sm}"}')
                dots.append(f'v_dot2_f32_bf16 v{sq}, {x}, {x}, {"0" if z else f"v{sq}"}')
        if 'nodot' in EXP and kt > 0: dots = ['s_nop 0'] * 6
        fb = (kt & 1) * 24
        n = 0
        for c in range(6):
            for t in (0, 1):
                A, B = a(fb + 4*c, 4), v(xf(t, kt), 4)
                if c >= 4: A, B = B, A
                ac = v(acc1(t, c), 4)
                e(f'v_mfma_f32_16x16x32_bf16 {ac}, {A}, {B}, {"0" if kt == 0 else ac}')
                if n < 6:
                    for r in nxt[2*n:2*n+2]: e(r, ('f', kt+1))
                    e(dots.pop(0))
                else:
                    for _ in range(2):
                        if dots: e(dots.pop(0))
                n += 1
        assert not dots
        if side and kt >= 1: side.pop(0)()
    while side: side.pop(0)()
    stamp()
    e.wait_vm('halo')
    Lv, Lj = e.label('halo_v'), e.label('halo_j')
    e(f's_cmp_lg_u32 {sKH}, 0\ns_cbranch_scc1 {Lv}')
    hv = (vA[4], vA[5])
    DEP = 3
    def hk_reads(kt):
        b = (kt % 6) * 8
        for i, seg in enumerate((1, 0)):
            for h in (0, 1): e(p1_tr(a(b + 4*i + 2*h, 2), kt, seg, h, hv), ('hk', kt))
    for kt in range(DEP): hk_reads(kt)
    for kt in range(16):
        e.wait_lg(('hk', kt))
        b = (kt % 6) * 8
        e(f'v_mfma_f32_16x16x32_bf16 {v(HA,4)}, {a(b,4)}, {a(XH+4*kt,4)}, {"0" if kt == 0 else v(HA,4)}')
        e(f'v_mfma_f32_16x16x32_bf16 {v(HB,4)}, {a(b+4,4)}, {a(XH+4*kt,4)}, {"0" if kt == 0 else v(HB,4)}')
        if kt + DEP < 16: hk_reads(kt + DEP)
    e(f's_lshl_b32 {sT0}, {sMH}, 6\nv_lshlrev_b32 {vT0}, 4, {vG}\nv_add_u32 {vT0}, {sT0}, {vT0}\nv_add_u32 {vT0}, {CS_QK}, {vT0}')
    e('s_mov_b32 exec_lo, 0x00010001\ns_mov_b32 exec_hi, 0x00010001')
    e(f'ds_write_b128 {vT0}, {v(HB,4)}\nds_write_b128 {vT0}, {v(HA,4)} offset:128')
    e(f's_mov_b64 exec, -1\ns_branch {Lj}')
    e(f'{Lv}:')
    DEP = 6
    def hv_reads(kt):
        b = (kt % 12) * 4
        for h in (0, 1): e(p1_tr(a(b + 2*h, 2), kt, 2, h, hv), ('hv', kt))
    for kt in range(DEP): hv_reads(kt)
    for kt in range(16):
        e(f'v_mfma_f32_16x16x32_bf16 {v(HB,4)}, {a(XH+4*kt,4)}, {a(XH+4*kt,4)}, {"0" if kt == 0 else v(HB,4)}')
        e.wait_lg(('hv', kt))
        b = (kt % 12) * 4
        e(f'v_mfma_f32_16x16x32_bf16 {v(HA,4)}, {a(XH+4*kt,4)}, {a(b,4)}, {"0" if kt == 0 else v(HA,4)}')
        if kt + DEP < 16: hv_reads(kt + DEP)
    e(f's_lshl_b32 {sT0}, {sMH}, 10\ns_add_u32 {sT0}, {sT0}, {EX}\nv_add_u32 {vT0}, {sT0}, {vL16}')
    e(f'v_lshlrev_b32 {vT1}, 4, {vJ}\nv_add_u32 {vT1}, {sT0}, {vT1}')
    e(f'v_lshrrev_b32 {vT2}, 2, {vJ}\nv_lshl_add_u32 {vT2}, {vT2}, 8, {vT1}\nv_and_b32 {vT3}, 3, {vJ}\nv_lshl_add_u32 {vT2}, {vT3}, 2, {vT2}')
    e(f'ds_write_b128 {vT0}, {v(HB,4)}')
    e(f'ds_read_b32 v124, {vT1}\nds_read_b32 v125, {vT2}')
    e(f's_lshl_b32 {sT0}, {sMH}, 6\ns_add_u32 {sT0}, {sT0}, {CS_V}\nv_lshlrev_b32 {vT0}, 2, {vJ}\nv_add_u32 {vT1}, {sT0}, {vT0}')
    e(f's_mov_b64 exec, 0xffff\nds_write_b32 {vT1}, v{HA}\ns_mov_b64 exec, -1')
    e('s_waitcnt lgkmcnt(0)')
    ln_stats('v124', 'v125', 'v126', 'v127', 22 + 2)
    e(f'v_add_u32 {vT0}, {ST_R}, {vT0}')
    e(f'ds_write_b32 {vT0}, v126\nds_write_b32 {vT0}, v127 offset:{ST_N - ST_R}')
    e(f'{Lj}:')
    e.fence_hazards()
    e(f'v_permlane32_swap_b32 v{SUM0}, v{SUM1}\nv_permlane32_swap_b32 v{SQ0}, v{SQ1}')
    e(f'v_add_f32 v{SUM0}, v{SUM0}, v{SUM1}\nv_add_f32 v{SQ0}, v{SQ0}, v{SQ1}')
    e(f'v_mov_b32 v{SUM1}, v{SUM0}\nv_mov_b32 v{SQ1}, v{SQ0}')
    e(f'v_permlane16_swap_b32 v{SUM0}, v{SUM1}\nv_permlane16_swap_b32 v{SQ0}, v{SQ1}')
    e(f'v_add_f32 v{SUM0}, v{SUM0}, v{SUM1}\nv_add_f32 v{SQ0}, v{SQ0}, v{SQ1}')
    R0, N0, R1, N1 = 124, 125, 126, 127
    ln_stats(f'v{SUM0}', f'v{SQ0}', f'v{R0}', f'v{N0}', SUM1)
    e(f'v_lshrrev_b32 {vT0}, 1, {vG}\nv_lshl_add_u32 {vT0}, {vT0}, 4, {vJ}\ns_lshl_b32 {sT0}, {sW}, 7\ns_add_u32 {sT0}, {sT0}, {ST_R + 64}')
    e(f'v_lshlrev_b32 {vT0}, 2, {vT0}\nv_add_u32 {vT0}, {sT0}, {vT0}')
    e(f'ds_write_b32 {vT0}, v{R0}\nds_write_b32 {vT0}, v{N0} offset:{ST_N - ST_R}')
    e(f'v_mov_b32 v{R1}, v{R0}\nv_mov_b32 v{N1}, v{N0}')
    e(f'v_permlane32_swap_b32 v{R0}, v{R1}\nv_permlane32_swap_b32 v{N0}, v{N1}')
    e(f'v_lshlrev_b32 {vT1}, 4, {vG}\nv_add_u32 {vT2}, {sT0}, {vT1}')
    e(f'v_lshlrev_b32 {vT3}, 2, {vJ}')
    e('s_waitcnt lgkmcnt(0)\ns_barrier')
    CSQ = 128
    CSV = 144
    RR, NR = 148, 156
    HRc, HNc = 146, 147
    HRr, HNr = 164, 168
    e(f'v_add_u32 {vT0}, {SC}, {vT1}')
    for i in range(4): e(f'ds_read_b128 {v(CSQ + 4*i, 4)}, {vT0} offset:{CS_QK - SC + 64*i}', 'ep1')
    e(f'v_add_u32 {vT3}, {SC}, {vT3}')
    for h in range(2): e(f'ds_read_b32 v{CSV + h}, {vT3} offset:{CS_V - SC + 64*h}', 'ep1')
    for t in range(2):
        e(f'ds_read_b128 {v(RR + 4*t, 4)}, {vT2} offset:{64*t}', 'ep2')
        e(f'ds_read_b128 {v(NR + 4*t, 4)}, {vT2} offset:{64*t + ST_N - ST_R}', 'ep2')
    e(f'ds_read_b32 v{HRc}, {vT3} offset:{ST_R - SC}\nds_read_b32 v{HNc}, {vT3} offset:{ST_N - SC}', 'ep3')
    e(f'ds_read_b128 {v(HRr,4)}, {vT0} offset:{ST_R - SC}\nds_read_b128 {v(HNr,4)}, {vT0} offset:{ST_N - SC}', 'ep3')
    for p in range(12, 16): dma('wo', p, wo_slot(p), 'wo')
    dma_big('w1', 0, 10)
    QP = 176
    KP = 184
    VP = 196
    e.wait_lg('ep1')
    for t in (1, 0):
        R, N = (R0, N0) if t == 0 else (R1, N1)
        for c in (2, 3, 0, 1):
            ac = acc1(t, c)
            for r in range(4):
                e(f'v_mul_f32 v{ac+r}, v{ac+r}, v{R}')
            for r in range(4):
                e(f'v_fmac_f32 v{ac+r}, v{N}, v{CSQ + 4*c + r}')
            dst = QP + (t*2 + c)*2 if c < 2 else KP + (c-2)*6 + 2*(t+1)
            e(f'v_cvt_pk_bf16_f32 v{dst}, v{ac}, v{ac+1}\nv_cvt_pk_bf16_f32 v{dst+1}, v{ac+2}, v{ac+3}')
        if t == 1: e.wait_lg('ep2')
        for h in (0, 1):
            ac = acc1(t, 4 + h)
            for r in range(4):
                e(f'v_mul_f32 v{ac+r}, v{ac+r}, v{RR + 4*t + r}')
            for r in range(4):
                e(f'v_fmac_f32 v{ac+r}, v{NR + 4*t + r}, v{CSV + h}')
            dst = VP + h*6 + 2*(t+1)
            e(f'v_cvt_pk_bf16_f32 v{dst}, v{ac}, v{ac+1}\nv_cvt_pk_bf16_f32 v{dst+1}, v{ac+2}, v{ac+3}')
        if t == 1:
            e(f's_lshl_b32 {sT0}, {sW}, 11\ns_add_u32 {sT0}, {sT0}, {EX}\nv_add_u32 {vT0}, {sT0}, {vL8}')
            for i, reg in enumerate((KP + 4, KP + 10, VP + 4, VP + 10)):
                e(f'ds_write_b64 {vT0}, {v(reg, 2)} offset:{2048 + 512*i}', 'exw')
            e.wait_lg('ep3')
            La, Lb = e.label('hn_v'), e.label('hn_j')
            e(f's_cmp_lg_u32 {sKH}, 0\ns_cbranch_scc1 {La}')
            for r in range(4): e(f'v_mov_b32_dpp v{HB+r}, v{HA+r} row_newbcast:0 row_mask:0xf bank_mask:0xf')
            for r in range(4): e(f'v_mul_f32 v{HA+r}, v{HA+r}, v{HRc}')
            for r in range(4): e(f'v_fmac_f32 v{HA+r}, v{HNc}, v{HB+r}')
            e(f's_branch {Lb}')
            e(f'{La}:')
            e(f's_cmp_lg_u32 {sMH}, 0\ns_cselect_b64 vcc, -1, 0\nv_cndmask_b32 v{HB}, v{CSV}, v{CSV+1}, vcc')
            for r in range(4): e(f'v_mul_f32 v{HA+r}, v{HA+r}, v{HRr+r}')
            for r in range(4): e(f'v_fmac_f32 v{HA+r}, v{HNr+r}, v{HB}')
            e(f'{Lb}:')
            e(f'v_cvt_pk_bf16_f32 v{HB}, v{HA}, v{HA+1}\nv_cvt_pk_bf16_f32 v{HB+1}, v{HA+2}, v{HA+3}')
            e(f's_lshl_b32 {sT1}, {sW}, 9\ns_add_u32 {sT1}, {sT1}, {EX}\nv_add_u32 {vT1}, {sT1}, {vL8}')
            e(f'ds_write_b64 {vT1}, {v(HB, 2)}', 'exw')
    e('s_waitcnt lgkmcnt(0)\ns_barrier')
    for i, reg in enumerate((KP, KP + 6, VP, VP + 6)):
        e(f'ds_read_b64 {v(reg, 2)}, {vT0} offset:{512*i}', 'exr')
    SP, SCU = 64, 80
    combos = [(1, 0), (1, 1), (0, 0), (0, 1)]
    for n, (t, h) in enumerate(combos):
        if n == 2: e.wait_lg('exr')
        q = v(QP + (t*2 + h)*2, 2)
        e(f'v_mfma_f32_16x16x16_bf16 {v(SCU + 4*n, 4)}, {v(KP + h*6 + 2*(t+1), 2)}, {q}, 0')
        e(f'v_mfma_f32_16x16x16_bf16 {v(SP + 4*n, 4)}, {v(KP + h*6 + 2*t, 2)}, {q}, {v(NEG,4) if t == 0 else "0"}')
    SV = 96
    MX = 104
    for n in range(4):
        for u in range(2):
            e(f'v_cndmask_b32 v{SCU+4*n+2*u}, v{SCU+4*n+2*u}, v{SCU+4*n+2*u+1}, {sPAR}')
            e(f'v_cndmask_b32 v{SP+4*n+2*u}, v{SP+4*n+2*u}, v{SP+4*n+2*u+1}, {sPAR}')
        for u in range(2):
            e(f'v_cndmask_b32 v{SV+2*n+u}, v{SP+4*n+2*u}, v{SCU+4*n+2*u}, {(sCUR0, sCUR1)[u]}')
        e(f'v_max_f32 v{MX+n}, v{SV+2*n}, v{SV+2*n+1}')
    e(f'v_permlane32_swap_b32 v{MX}, v{MX+1}\nv_permlane32_swap_b32 v{MX+2}, v{MX+3}')
    e(f'v_max_f32 v{MX}, v{MX}, v{MX+1}\nv_max_f32 v{MX+2}, v{MX+2}, v{MX+3}')
    e(f'v_permlane16_swap_b32 v{MX}, v{MX+2}\nv_max_f32 v{MX}, v{MX}, v{MX+2}')
    cexp = 0.25 * math.log2(math.e)
    e(f's_mov_b32 {sC1}, {hx(f2u(cexp))}')
    e(f'v_mul_f32 v{MX}, {hx(f2u(-cexp))}, v{MX}')
    e(f'v_mov_b32 v{MX+2}, v{MX}\nv_permlane16_swap_b32 v{MX}, v{MX+2}')
    e(f'v_mov_b32 v{MX+1}, v{MX}\nv_mov_b32 v{MX+3}, v{MX+2}')
    e(f'v_permlane32_swap_b32 v{MX}, v{MX+1}\nv_permlane32_swap_b32 v{MX+2}, v{MX+3}')
    PB = 64
    OA, SMA = 80, 112
    SMA = 128
    for n in range(4):
        for u in range(2): e(f'v_fma_f32 v{SV+2*n+u}, v{SV+2*n+u}, {sC1}, v{MX+n}')
    for n in range(4):
        for u in range(2): e(f'v_exp_f32 v{SV+2*n+u}, v{SV+2*n+u}')
    for n in range(4): e(f'v_cvt_pk_bf16_f32 v{SV+2*n}, v{SV+2*n}, v{SV+2*n+1}')
    for n, (t, h) in enumerate(combos):
        for i, sel in enumerate((SELP0, SELP1, SELC0, SELC1)):
            e(f'v_perm_b32 v{PB+4*n+i}, v{SV+2*n}, v{SV+2*n}, {sel}')
    for n, (t, h) in enumerate(combos):
        e(f'v_mfma_f32_16x16x32_bf16 {v(SMA+4*n,4)}, {v(ONES,4)}, {v(PB+4*n,4)}, 0')
        e(f'v_mfma_f32_16x16x32_bf16 {v(OA+4*n,4)}, {v(VP + h*6 + 2*t, 4)}, {v(PB+4*n,4)}, 0')
    e(f's_lshl_b32 {sT0}, {sTB}, 3\ns_lshl_b32 {sT1}, {sW}, 1\ns_add_u32 {sT0}, {sT0}, {sT1}\ns_lshl_b32 {sT0}, {sT0}, 4\ns_add_u32 {sT0}, {sT0}, {sP}')
    e(f's_lshl_b32 {sT0}, {sT0}, 10\ns_add_u32 {sT0}, {sT0}, {WS_O(l)}\ns_add_u32 {sT1}, {sT0}, 16384')
    for n in range(4): e(f'v_rcp_f32 v{SMA+4*n}, v{SMA+4*n}')
    OP = 96
    for n, (t, h) in enumerate(combos):
        for r in range(4): e(f'v_mul_f32 v{OA+4*n+r}, v{OA+4*n+r}, v{SMA+4*n}')
        d = OP + t*4 + h*2
        e(f'v_cvt_pk_bf16_f32 v{d}, v{OA+4*n}, v{OA+4*n+1}\nv_cvt_pk_bf16_f32 v{d+1}, v{OA+4*n+2}, v{OA+4*n+3}')
        if h == 1:
            e(f'buffer_store_dwordx4 {v(OP + t*4, 4)}, {vL16}, {srd(WS)}, {(sT0, sT1)[t]} offen sc1', 'ost')
    stamp()
    publish(WS_FLAG(l, 0), f's_lshl_b32 {sT0}, {sTB}, 4\ns_add_u32 {sT0}, {sT0}, {sP}')

def big_addr(with_kh):
    e(f'v_lshrrev_b32 {vT0}, 2, {vL}')
    e(f'v_lshrrev_b32 {vT1}, 3, {vL}\nv_and_b32 {vT1}, 3, {vT1}')
    e(f'v_lshlrev_b32 {vT0}, 7, {vT0}\nv_lshl_add_u32 {vT0}, {vT1}, 5, {vT0}')
    e(f'v_and_b32 {vT1}, 3, {vL}\nv_lshl_add_u32 {vT0}, {vT1}, 3, {vT0}')
    if with_kh:
        e(f's_lshl_b32 {sT0}, {sKH}, 6\nv_xor_b32 {vT0}, {sT0}, {vT0}\ns_lshl_b32 {sT0}, {sKH}, 12\nv_add_u32 {vT0}, {sT0}, {vT0}')
    for sg in range(4):
        e(f'v_xor_b32 v{vA[sg]}, {32*sg}, {vT0}')
        e(f'v_add_u32 v{vA[4+sg]}, {12*SLOT}, v{vA[sg]}\nv_add_u32 v{vA[8+sg]}, {24*SLOT}, v{vA[sg]}')

def big_tr(dst, slot, sg, h):
    st = slot // 12
    return f'ds_read_b64_tr_b16 {dst}, v{vA[st*4+sg]} offset:{(slot - st*12)*SLOT + h*2048}'

RS = 128
def phase2(l):
    big_addr(False)
    poll(WS_FLAG(l, 0), f's_lshr_b32 {sT0}, {sSB}, 1\ns_lshl_b32 {sT0}, {sT0}, 4', 16)
    stamp()
    e(f's_lshl_b32 {sT0}, {sSB}, 2\ns_add_u32 {sT0}, {sT0}, {sW}\ns_lshl_b32 {sT0}, {sT0}, 14\ns_add_u32 {sT0}, {sT0}, {WS_O(l)}')
    for p in range(16):
        if p and p % 4 == 0: e(f's_add_u32 {sT0}, {sT0}, 4096')
        e(f'buffer_load_dwordx4 {a(4*p, 4)}, {vL16}, {srd(WS)}, {sT0} offen offset:{(p % 4)*1024} sc1', ('o', p))
    stage_big('w1')
    FB = 64
    def reads(p):
        b = FB + (p % 3) * 16
        return [big_tr(a(b + 4*ct + 2*h, 2), wo_slot(p), ct, h) for ct in range(4) for h in (0, 1)]
    for r in reads(0): e(r, ('f2', 0))
    for r in reads(1)[:6]: e(r, ('f2', 1))
    pend = [(r, ('f2', 1)) for r in reads(1)[6:]]
    AC = 64
    for p in range(16):
        if p + 2 < 16: pend += [(r, ('f2', p+2)) for r in reads(p+2)]
        e.wait_both(('o', p), ('f2', p))
        b = FB + (p % 3) * 16
        for ct in range(4):
            ac = v(AC + 4*ct, 4)
            e(f'v_mfma_f32_16x16x32_bf16 {ac}, {a(b + 4*ct, 4)}, {a(4*p, 4)}, {"0" if p == 0 else ac}')
            for _ in range(2):
                if pend:
                    r, tg = pend.pop(0); e(r, tg)
    stamp()
    T = 80
    for ct in range(4):
        e(f'v_lshlrev_b32 v{T+4*ct}, 16, v{CARRY+2*ct}\nv_and_b32 v{T+4*ct+1}, 0xffff0000, v{CARRY+2*ct}')
        e(f'v_lshlrev_b32 v{T+4*ct+2}, 16, v{CARRY+2*ct+1}\nv_and_b32 v{T+4*ct+3}, 0xffff0000, v{CARRY+2*ct+1}')
    for i in range(16): e(f'v_add_f32 v{AC+i}, v{AC+i}, v{T+i}')
    S_, Q_ = 96, 98
    e(f'v_add_f32 v{S_}, v{AC}, v{AC+1}\nv_mul_f32 v{Q_}, v{AC}, v{AC}\nv_add_f32 v{S_+1}, v{AC+2}, v{AC+3}\nv_mul_f32 v{Q_+1}, v{AC+1}, v{AC+1}')
    for i in range(2, 16):
        e(f'v_fmac_f32 v{Q_ + (i & 1)}, v{AC+i}, v{AC+i}')
        if i >= 4: e(f'v_add_f32 v{S_ + (i & 1)}, v{S_ + (i & 1)}, v{AC+i}')
    e(f'v_add_f32 v{S_}, v{S_}, v{S_+1}\nv_add_f32 v{Q_}, v{Q_}, v{Q_+1}')
    e(f'v_permlane32_swap_b32 v{S_}, v{Q_}\nv_add_f32 v{S_}, v{S_}, v{Q_}\nv_mov_b32 v{Q_}, v{S_}')
    e(f'v_permlane16_swap_b32 v{S_}, v{Q_}\nv_add_f32 v{S_}, v{S_}, v{Q_}\nv_mov_b32 v{S_+1}, {vTAG}')
    e(f's_lshl_b32 {sT0}, {sSB}, 2\ns_add_u32 {sT0}, {sT0}, {sW}\ns_lshl_b32 {sT0}, {sT0}, 11\ns_add_u32 {sT0}, {sT0}, {WS_STAT(l)}')
    e(f's_lshl_b32 {sT1}, {sDT}, 8\ns_add_u32 {sT1}, {sT1}, {sT0}')
    e(f'v_lshrrev_b32 {vT0}, 1, {vG}\nv_lshlrev_b32 {vT0}, 3, {vT0}\nv_lshl_add_u32 {vT0}, {vJ}, 4, {vT0}')
    e(f'buffer_store_dwordx2 {v(S_, 2)}, {vT0}, {srd(WS)}, {sT1} offen sc1', 'gran')
    XP = 100
    e(f's_lshl_b32 {sT1}, {sW}, 11\ns_add_u32 {sT1}, {sT1}, {SC}\nv_lshlrev_b32 {vT1}, 7, {vJ}\nv_lshl_add_u32 {vT1}, {vG}, 3, {vT1}\nv_add_u32 {vT1}, {sT1}, {vT1}')
    for ct in range(4):
        e(f'v_cvt_pk_bf16_f32 v{XP+2*ct}, v{AC+4*ct}, v{AC+4*ct+1}\nv_cvt_pk_bf16_f32 v{XP+2*ct+1}, v{AC+4*ct+2}, v{AC+4*ct+3}')
        e(f'ds_write_b64 {vT1}, {v(XP+2*ct, 2)} offset:{8192 + 32*ct}', 'x1w')
    G0 = 108
    L = e.label('stat'); Ld = L + '_d'
    e(f's_mov_b32 {sCNT}, 30000')
    e(f'{L}:')
    e(f'buffer_load_dwordx4 {v(G0, 4)}, {vL16}, {srd(WS)}, {sT0} offen sc1', 'gp')
    e(f'buffer_load_dwordx4 {v(G0+4, 4)}, {vL16}, {srd(WS)}, {sT0} offen offset:1024 sc1', 'gp')
    e('s_waitcnt vmcnt(0)')
    e(f'v_xor_b32 v{G0+1}, v{G0+1}, {vTAG}\nv_xor_b32 v{G0+3}, v{G0+3}, {vTAG}\nv_xor_b32 v{G0+5}, v{G0+5}, {vTAG}\nv_xor_b32 v{G0+7}, v{G0+7}, {vTAG}')
    e(f'v_or_b32 v{G0+1}, v{G0+1}, v{G0+3}\nv_or3_b32 v{G0+1}, v{G0+1}, v{G0+5}, v{G0+7}')
    e(f'v_cmp_ne_u32 vcc, 0, v{G0+1}')
    e(f's_cbranch_vccz {Ld}')
    e(f's_sub_u32 {sCNT}, {sCNT}, 1\ns_cmp_lg_u32 {sCNT}, 0\ns_cbranch_scc1 {L}')
    e(f'{Ld}:')
    stamp()
    e(f'v_add_f32 v{S_}, v{G0}, v{G0+4}\nv_add_f32 v{Q_}, v{G0+2}, v{G0+6}')
    for sw in ('v_permlane32_swap_b32', 'v_permlane16_swap_b32'):
        e(f'v_mov_b32 v{S_+1}, v{S_}\nv_mov_b32 v{Q_+1}, v{Q_}')
        e(f'{sw} v{S_}, v{S_+1}\n{sw} v{Q_}, v{Q_+1}')
        e(f'v_add_f32 v{S_}, v{S_}, v{S_+1}\nv_add_f32 v{Q_}, v{Q_}, v{Q_+1}')
    ln_stats(f'v{S_}', f'v{Q_}', f'v{S_+1}', f'v{Q_+1}', G0, double=True)
    for i in range(16): e(f'v_fma_f32 v{AC+i}, v{AC+i}, v{S_+1}, v{Q_+1}')
    for ct in range(4):
        e(f'v_cvt_pk_bf16_f32 v{XP+2*ct}, v{AC+4*ct}, v{AC+4*ct+1}\nv_cvt_pk_bf16_f32 v{XP+2*ct+1}, v{AC+4*ct+2}, v{AC+4*ct+3}')
        e(f'ds_write_b64 {vT1}, {v(XP+2*ct, 2)} offset:{32*ct}', 'h2w')
    e(f'v_lshrrev_b32 {vT0}, 2, {vL}\nv_lshlrev_b32 {vT0}, 7, {vT0}\nv_and_b32 {vT2}, 3, {vL}\nv_lshl_add_u32 {vT0}, {vT2}, 4, {vT0}')
    e(f's_lshl_b32 {sT0}, {sKH}, 6\ns_lshl_b32 {sT1}, {sMH}, 3\ns_add_u32 {sT0}, {sT0}, {sT1}\ns_add_u32 {sT0}, {sT0}, {SC}\nv_add_u32 {vT0}, {sT0}, {vT0}')
    e(f's_lshl_b32 {sT0}, {sKH}, 12\ns_lshl_b32 {sT1}, {sMH}, 6\ns_add_u32 {sT0}, {sT0}, {sT1}\ns_add_u32 {sT0}, {sT0}, {SC + 8192}')
    e(f'v_lshlrev_b32 {vT2}, 7, {vJ}\nv_lshl_add_u32 {vT2}, {vG}, 4, {vT2}\nv_add_u32 {vT2}, {sT0}, {vT2}')
    e(f's_lshl_b32 {sT0}, {sDT}, 2\ns_add_u32 {sT0}, {sT0}, {sW}\ns_lshl_b32 {sT0}, {sT0}, 16\ns_lshl_b32 {sT1}, {sSB}, 11\ns_add_u32 {sT0}, {sT0}, {sT1}\ns_add_u32 {sT0}, {sT0}, {WS_H2(l)}')
    e('s_waitcnt lgkmcnt(0)\ns_barrier')
    HP = 80
    for kp in range(2):
        for h in range(2):
            e(f'ds_read_b64_tr_b16 {v(HP + 4*kp + 2*h, 2)}, {vT0} offset:{(32*kp + 16*h)*RS}', ('h2r', kp))
    for t in range(2): e(f'ds_read_b128 {v(CARRY + 4*t, 4)}, {vT2} offset:{16*t*RS}', 'x1r')
    for kp in range(2):
        e.wait_lg(('h2r', kp))
        e(f'buffer_store_dwordx4 {v(HP + 4*kp, 4)}, {vL16}, {srd(WS)}, {sT0} offen offset:{1024*kp} sc1', 'h2st')
    stamp()
    e('s_waitcnt lgkmcnt(0)')
    publish(WS_FLAG(l, 1), f's_lshl_b32 {sT0}, {sDT}, 5\ns_add_u32 {sT0}, {sT0}, {sSB}')

def big_loop(kind, l, nt, c, act_base_code, mid_cb):
    e(act_base_code)
    for t in range(nt):
        if t and t % 4 == 0: e(f's_add_u32 {sT0}, {sT0}, 4096\ns_add_u32 {sT1}, {sT1}, 4096')
        for T in (0, 1):
            e(f'buffer_load_dwordx4 {a(8*t + 4*T, 4)}, {vL16}, {srd(WS)}, {(sT0, sT1)[T]} offen offset:{(t % 4)*1024} sc1', ('act', t))
    FB = 96
    AC = 64
    def reads(t):
        b = FB + (t & 1) * 16
        return [big_tr(v(b + 4*sg + 2*h, 2), big_slot(c, t, 0), sg, h) for sg in range(4) for h in (0, 1)][:(1 if 'notr' in EXP else 8)]
    ns = nt - 18
    hs = ns // 2
    b1, b2 = hs, 2 * hs
    b3 = b2 + hs + 1
    assert b3 <= 18 + hs - 1 and b2 <= 17
    e(f'v_add_u32 {vT3}, {sM0}, {vL16}')
    e(f'v_add_u32 {vT2}, {12*SLOT}, {vT3}\nv_add_u32 {vT1}, {24*SLOT}, {vT3}')
    wa = (vT3, vT2, vT1)
    for r in reads(0): e(r, (kind + 'f', 0))
    for t in range(nt):
        e.wait_both(None if 'noactwait' in EXP else ('act', t), (kind + 'f', t))
        if t in (b1, b2, b3):
            e('s_waitcnt lgkmcnt(0)\ns_barrier')
            if t == b3: mid_cb(t)
        extra = [(r, (kind + 'f', t+1)) for r in reads(t+1)] if t + 1 < nt else []
        if b1 <= t < b2 + hs and 'nostw' not in EXP:
            ts = 18 + (t - b1)
            for kh in (0, 1):
                slot = big_slot(c, ts, kh)
                st = slot // 12
                extra.append((f'ds_write_b128 {wa[st]}, {v(STG + ((ts-18)*2 + kh)*4, 4)} offset:{(slot - st*12)*SLOT}', 'stw'))
        b = FB + (t & 1) * 16
        for sg in range(4):
            for T in (0, 1):
                ac = v(AC + (sg*2 + T)*4, 4)
                W_, X_ = v(b + 4*sg, 4), a(8*t + 4*T, 4)
                A, B = (W_, X_) if kind == 'w1' else (X_, W_)
                if 'nomfma' not in EXP or t == 0: e(f'v_mfma_f32_16x16x32_bf16 {ac}, {A}, {B}, {"0" if t == 0 else ac}')
                for _ in range(2):
                    if extra:
                        r, tg = extra.pop(0); e(r, tg)
        assert not extra
    stamp()
    e(f's_lshl_b32 {sT0}, {sW}, 12\ns_add_u32 {sT0}, {sT0}, {SC}\nv_add_u32 {vT0}, {sT0}, {vL16}\nv_xor_b32 {vT1}, 8192, {vT0}')
    assert SC % 16384 == 0
    for i in range(4): e(f'ds_write_b128 {vT0}, {v(AC + 16 + 4*i, 4)} offset:{1024*i}', 'xw')
    e('s_waitcnt lgkmcnt(0)\ns_barrier')
    for i in range(4): e(f'ds_read_b128 {v(96 + 4*i, 4)}, {vT1} offset:{1024*i}', ('xr', i))
    return b3

def phase3(l):
    Lskip, Lend = e.label('p3skip'), e.label('p3end')
    e(f's_cmp_ge_u32 {sI}, 28\ns_cbranch_scc1 {Lskip}')
    dma_big('w1', 10, 18)
    big_addr(True)
    e(f's_lshl_b32 {sT0}, {sKH}, 6\ns_add_u32 {sT0}, {sT0}, {sBW1}\nv_lshlrev_b32 {vT0}, 3, {vG}')
    for sg in range(2): e(f'buffer_load_dwordx2 {v(BIAS + 2*sg, 2)}, {vT0}, {srd(B1)}, {sT0} offen offset:{32*sg}', 'b1')
    poll(WS_FLAG(l, 1), f's_lshl_b32 {sT0}, {sDT3}, 5', 32)
    stamp()
    def mid(t):
        dma_big('w2', 0, t - 14)
        stage_big('w2')
    b3 = big_loop('w1', l, 32, C1,
             f's_lshl_b32 {sT0}, {sDT3}, 1\ns_add_u32 {sT0}, {sT0}, {sMH}\ns_lshl_b32 {sT0}, {sT0}, 17\ns_lshl_b32 {sT1}, {sKH}, 15\n'
             f's_add_u32 {sT0}, {sT0}, {sT1}\ns_add_u32 {sT0}, {sT0}, {WS_H2(l)}\ns_add_u32 {sT1}, {sT0}, 65536', mid)
    AC = 64
    BF = 112
    for sg in range(2):
        e(f'v_lshlrev_b32 v{BF+4*sg}, 16, v{BIAS+2*sg}\nv_and_b32 v{BF+4*sg+1}, 0xffff0000, v{BIAS+2*sg}')
        e(f'v_lshlrev_b32 v{BF+4*sg+2}, 16, v{BIAS+2*sg+1}\nv_and_b32 v{BF+4*sg+3}, 0xffff0000, v{BIAS+2*sg+1}')
    for i in range(16): e(f'v_add_f32 v{AC+i}, v{AC+i}, v{BF + (i // 8)*4 + (i % 4)}')
    k0 = -2.0 * math.sqrt(2.0 / math.pi) * math.log2(math.e)
    e(f's_mov_b32 {sC1}, {hx(f2u(k0 * 0.044715))}\nv_mov_b32 v120, {hx(f2u(k0))}')
    e(f's_lshl_b32 {sT0}, {sDT3}, 1\ns_add_u32 {sT0}, {sT0}, {sMH}\ns_mul_i32 {sT0}, {sT0}, 112\ns_lshl_b32 {sT1}, {sFT}, 1\ns_add_u32 {sT0}, {sT0}, {sT1}\ns_add_u32 {sT0}, {sT0}, {sKH}')
    e(f's_lshl_b32 {sT0}, {sT0}, 10\ns_add_u32 {sT0}, {sT0}, {WS_U(l)}\ns_add_u32 {sT1}, {sT0}, {56*1024}')
    TT = 80
    for i in range(4):
        e.wait_lg(('xr', i))
        for r in range(4): e(f'v_add_f32 v{AC+4*i+r}, v{AC+4*i+r}, v{96+4*i+r}')
    for i in range(16): e(f'v_mul_f32 v{TT+i}, v{AC+i}, v{AC+i}')
    for i in range(16): e(f'v_fma_f32 v{TT+i}, v{TT+i}, {sC1}, v120')
    for i in range(16): e(f'v_mul_f32 v{TT+i}, v{TT+i}, v{AC+i}')
    for i in range(16): e(f'v_exp_f32 v{TT+i}, v{TT+i}')
    for i in range(16): e(f'v_add_f32 v{TT+i}, 1.0, v{TT+i}')
    for i in range(16): e(f'v_rcp_f32 v{TT+i}, v{TT+i}')
    for i in range(16): e(f'v_mul_f32 v{AC+i}, v{AC+i}, v{TT+i}')
    UP = 96
    for T in (0, 1):
        for sg in (0, 1):
            s_ = AC + (sg*2 + T)*4
            e(f'v_cvt_pk_bf16_f32 v{UP+4*T+2*sg}, v{s_}, v{s_+1}\nv_cvt_pk_bf16_f32 v{UP+4*T+2*sg+1}, v{s_+2}, v{s_+3}')
        e(f'buffer_store_dwordx4 {v(UP+4*T, 4)}, {vL16}, {srd(WS)}, {(sT0, sT1)[T]} offen sc1', 'ust')
    stamp()
    publish(WS_FLAG(l, 2), f's_lshl_b32 {sT0}, {sDT3}, 5\ns_add_u32 {sT0}, {sT0}, {sFT}')
    dma_big('w2', b3 - 14, 18)
    e(f's_branch {Lend}')
    e(f'{Lskip}:')
    big_addr(True)
    dma_big('w2', 0, 18)
    stage_big('w2')
    e(f'{Lend}:')

def phase4(l):
    last = l == 1
    e(f's_lshl_b32 {sT0}, {sKH}, 6\ns_add_u32 {sT0}, {sT0}, {sBW2}\nv_lshlrev_b32 {vT0}, 1, {vJ}')
    for sg in range(2): e(f'buffer_load_ushort v{BIAS + sg}, {vT0}, {srd(B2)}, {sT0} offen offset:{32*sg}', 'b2')
    poll(WS_FLAG(l, 2), f's_lshl_b32 {sT0}, {sDT}, 5', 28)
    stamp()
    freed = []
    def mid(t):
        if last: return
        for tt in range(10, t):
            for kh in (0, 1): freed.append(big_slot(C2, tt, kh))
        for sl in freed:
            if sl < 24: dma('qkv', sl, sl, 'qkv2')
            else: dma('wo', sl - 24, sl, 'wo')
    big_loop('w2', l, 28, C2,
             f's_lshl_b32 {sT0}, {sDT}, 1\ns_add_u32 {sT0}, {sT0}, {sMH}\ns_mul_i32 {sT0}, {sT0}, {112*1024}\ns_mul_i32 {sT1}, {sKH}, {28*1024}\n'
             f's_add_u32 {sT0}, {sT0}, {sT1}\ns_add_u32 {sT0}, {sT0}, {WS_U(l)}\ns_add_u32 {sT1}, {sT0}, {56*1024}', mid)
    AC = 64
    RX = 112
    for sg in range(2):
        e(f'v_lshlrev_b32 v{BIAS+sg}, 16, v{BIAS+sg}')
        for i in range(4):
            e(f'v_lshlrev_b32 v{RX+8*sg+2*i}, 16, v{CARRY+4*sg+i}\nv_and_b32 v{RX+8*sg+2*i+1}, 0xffff0000, v{CARRY+4*sg+i}')
    for i in range(16): e(f'v_add_f32 v{RX+i}, v{RX+i}, v{BIAS + i // 8}')
    for i in range(16): e(f'v_add_f32 v{AC+i}, v{AC+i}, v{RX+i}')
    e(f's_lshl_b32 {sT0}, {sSB}, 1\ns_add_u32 {sT0}, {sT0}, {sKH}\ns_lshl_b32 {sT0}, {sT0}, 15\ns_add_u32 {sT0}, {sT0}, {sBWO}\ns_lshl_b32 {sT1}, {sMH}, 6\ns_add_u32 {sT0}, {sT0}, {sT1}')
    if not last: e(f's_add_u32 {sT0}, {sT0}, {WS_X2}')
    e(f's_add_u32 {sT1}, {sT0}, 16384')
    XP = 80
    for sg in range(2):
        for i in (2*sg, 2*sg+1):
            e.wait_lg(('xr', i))
            for r in range(4): e(f'v_add_f32 v{AC+4*i+r}, v{AC+4*i+r}, v{96+4*i+r}')
        for i in range(4): e(f'v_cvt_pk_bf16_f32 v{XP+4*sg+i}, v{AC+8*sg+2*i}, v{AC+8*sg+2*i+1}')
        if last: e(f'buffer_store_dwordx4 {v(XP+4*sg, 4)}, {vXR}, {srd(OUTS)}, {(sT0, sT1)[sg]} offen', 'xst')
        else: e(f'buffer_store_dwordx4 {v(XP+4*sg, 4)}, {vXR}, {srd(WS)}, {(sT0, sT1)[sg]} offen sc1', 'xst')
    stamp()
    if last: return
    publish(WS_FLAG(l, 3), f's_lshl_b32 {sT0}, {sSB}, 3\ns_add_u32 {sT0}, {sT0}, {sDT}')
    e(f's_lshl_b32 {sT0}, {sKH}, 12\ns_lshl_b32 {sT1}, {sMH}, 6\ns_add_u32 {sT0}, {sT0}, {sT1}\ns_add_u32 {sT0}, {sT0}, {SC}')
    e(f'v_lshlrev_b32 {vT2}, 7, {vJ}\nv_lshl_add_u32 {vT2}, {vG}, 4, {vT2}\nv_add_u32 {vT2}, {sT0}, {vT2}')
    for sg in range(2): e(f'ds_write_b128 {vT2}, {v(XP+4*sg, 4)} offset:{16*sg*RS}', 'x2w')
    for sl in range(NSLOT):
        if sl in freed: continue
        if sl < 24: dma('qkv', sl, sl, 'qkv2')
        else: dma('wo', sl - 24, sl, 'wo')
    e(f's_lshl_b32 {sT1}, {sW}, 11\ns_add_u32 {sT1}, {sT1}, {SC}\nv_lshlrev_b32 {vT1}, 7, {vJ}\nv_lshl_add_u32 {vT1}, {vG}, 3, {vT1}\nv_add_u32 {vT1}, {sT1}, {vT1}')
    e('s_waitcnt lgkmcnt(0)\ns_barrier')
    for ct in range(4): e(f'ds_read_b64 {v(CARRY+2*ct, 2)}, {vT1} offset:{32*ct}', 'x2r')
    e('s_waitcnt lgkmcnt(0)')

def epilogue():
    L = e.label('ep')
    e(f's_or_b32 {sT0}, s2, {sW}\ns_cmp_lg_u32 {sT0}, 0\ns_cbranch_scc1 {L}')
    e(f'v_mov_b32 {vT0}, 0\ns_mov_b64 exec, 1')
    e(f'buffer_store_dword {vTAG}, {vT0}, {srd(WS)}, 0 offen sc1')
    e('s_mov_b64 exec, -1')
    e(f'{L}:')
    if STAMPS:
        stamp()
        e(f's_lshl_b32 {sT0}, s2, 2\ns_add_u32 {sT0}, {sT0}, {sW}\ns_lshl_b32 {sT0}, {sT0}, 8\ns_add_u32 {sT0}, {sT0}, {WS_DBG}')
        e(f'v_lshlrev_b32 {vT0}, 2, {vL}')
        e(f'buffer_store_dword {vSTAMP}, {vT0}, {srd(WS)}, {sT0} offen')
    e('s_endpgm')

prologue()
for l in range(2):
    phase1(l); phase2(l); phase3(l); phase4(l)
epilogue()

hdr = open('interleave_layers__sliding_local_dilated__mixer_token_mlp__prompt.s.ref').read().split('; Override')[0]
desc = f""".section .rodata,"a"
.p2align 6
.amdhsa_kernel {NAME}
  .amdhsa_next_free_vgpr 512
  .amdhsa_next_free_sgpr 96
  .amdhsa_accum_offset 256
  .amdhsa_group_segment_fixed_size 0
  .amdhsa_kernarg_size 88
  .amdhsa_user_sgpr_count 2
  .amdhsa_user_sgpr_kernarg_segment_ptr 1
  .amdhsa_system_sgpr_workgroup_id_x 1
.end_amdhsa_kernel
"""
open(OUT, 'w').write(hdr + f'; @launch grid=(256,1,1) block=(256,1,1) lds={LDS_BYTES}\n.amdgcn_target "amdgcn-amd-amdhsa--gfx950"\n.text\n' + e.text() + desc)
print('instructions', e.ninstr, 'stamps', nstamp[0])
```

```python
import re

REG_RE = re.compile(r'\b([vas])(\d+)\b|\b([vas])\[(\d+):(\d+)\]|\b(vcc|exec|m0|scc)\b')

def regs_of(op):
    out = []
    for m in REG_RE.finditer(op):
        if m.group(1):
            out.append((m.group(1), int(m.group(2))))
        elif m.group(3):
            out += [(m.group(3), i) for i in range(int(m.group(4)), int(m.group(5)) + 1)]
        else:
            out.append((m.group(6), 0))
    return out

TRANS = ('v_exp_f32', 'v_log_f32', 'v_rcp_f32', 'v_rsq_f32', 'v_sqrt_f32', 'v_sin_f32', 'v_cos_f32')

def split_ops(s):
    out, depth, cur = [], 0, ''
    for ch in s:
        if ch == '[': depth += 1
        if ch == ']': depth -= 1
        if ch == ',' and depth == 0:
            out.append(cur.strip()); cur = ''
        else:
            cur += ch
    if cur.strip(): out.append(cur.strip())
    return out

class Ins:
    __slots__ = ('text', 'mn', 'cls', 'wr', 'rd', 'srcc', 'ab', 'wide_store', 'dpp', 'states')

def classify(text):
    t = text.split(';')[0].strip()
    parts = t.split(None, 1)
    mn = parts[0]
    ops = split_ops(parts[1]) if len(parts) > 1 else []
    I = Ins(); I.text = text; I.mn = mn; I.wr = []; I.rd = []; I.srcc = []; I.ab = []; I.wide_store = []; I.dpp = False; I.states = 1
    if mn == 's_nop':
        I.cls = 'nop'; I.states = int(ops[0], 0) + 1
    elif mn.startswith('v_mfma'):
        I.cls = 'mfma'; I.wr = regs_of(ops[0]); I.ab = regs_of(ops[1]) + regs_of(ops[2]); I.srcc = regs_of(ops[3]); I.rd = I.ab + I.srcc
    elif mn.startswith('v_'):
        I.cls = 'valu'
        if mn.startswith('v_cmp'):
            I.wr = regs_of(ops[0]); I.rd = sum((regs_of(o) for o in ops[1:]), [])
        elif mn.startswith('v_permlane') or mn.startswith('v_swap'):
            I.wr = regs_of(ops[0]) + regs_of(ops[1]); I.rd = list(I.wr)
        elif mn in ('v_add_co_u32', 'v_sub_co_u32', 'v_addc_co_u32'):
            I.wr = regs_of(ops[0]) + regs_of(ops[1]); I.rd = sum((regs_of(o) for o in ops[2:]), [])
        else:
            I.wr = regs_of(ops[0]); I.rd = sum((regs_of(o) for o in ops[1:]), [])
            if mn.startswith('v_fmac') or mn.startswith('v_dot2c') or mn.startswith('v_writelane') or mn.startswith('v_pk_fmac'):
                I.rd += I.wr
        I.dpp = '_dpp' in mn or 'row_' in t or 'quad_perm' in t
    elif mn.startswith('buffer_') or mn.startswith('global_'):
        I.cls = 'vmem'
        if mn in ('buffer_inv', 'buffer_wbl2'):
            pass
        elif 'load' in mn and ' lds' in (' ' + t + ' ').replace(',', ' ') and mn.startswith('buffer_') and len(ops) == 3:
            I.rd = sum((regs_of(o) for o in ops), []) + [('m0', 0)]
        elif 'load' in mn:
            I.wr = regs_of(ops[0]); I.rd = sum((regs_of(o) for o in ops[1:]), [])
        else:
            I.rd = sum((regs_of(o) for o in ops), [])
            if 'x4' in mn or 'x3' in mn:
                I.wide_store = regs_of(ops[0]) if mn.startswith('buffer_') else regs_of(ops[1])
    elif mn.startswith('ds_'):
        I.cls = 'ds'
        if 'read' in mn or 'permute' in mn or 'swizzle' in mn:
            I.wr = regs_of(ops[0]); I.rd = sum((regs_of(o) for o in ops[1:]), [])
        else:
            I.rd = sum((regs_of(o) for o in ops), [])
    elif mn.startswith('s_load') or mn.startswith('s_memtime') or mn.startswith('s_memrealtime'):
        I.cls = 'smem'; I.wr = regs_of(ops[0]); I.rd = sum((regs_of(o) for o in ops[1:]), [])
    elif mn.startswith('s_'):
        I.cls = 'salu'
        if mn.startswith('s_cmp') or mn.startswith('s_cbranch') or mn in ('s_branch', 's_waitcnt', 's_barrier', 's_endpgm', 's_sleep', 's_setprio'):
            I.rd = sum((regs_of(o) for o in ops), []) if mn.startswith('s_cmp') else []
            if 'vcc' in mn: I.rd = [('vcc', 0)]
        else:
            I.wr = regs_of(ops[0]); I.rd = sum((regs_of(o) for o in ops[1:]), [])
    else:
        raise ValueError('unknown instruction ' + text)
    return I

class Emitter:
    def __init__(self):
        self.lines = []
        self.hist = []
        self.vm = []
        self.lg = []
        self.nlabel = 0
        self.ninstr = 0
        self.side = []
        self.auto = 0
        self._acnt = 0
        self._in_side = False

    def need(self, I):
        miss = 0
        dist = 0
        rd = set(I.rd); wr = set(I.wr)
        for P in reversed(self.hist):
            req = 0
            pw = set(P.wr)
            if P.cls == 'valu':
                vw = {r for r in pw if r[0] in 'va'}
                sw = {r for r in pw if r[0] in ('s', 'vcc')}
                isdot = P.mn.startswith('v_dot')
                if I.cls == 'mfma' and vw & rd: req = max(req, 3 if isdot else 2)
                if I.cls == 'valu':
                    if I.mn.startswith('v_permlane') and vw & rd: req = max(req, 2)
                    if I.dpp and vw & rd: req = max(req, 2)
                    if I.mn.startswith('v_readlane') or I.mn.startswith('v_readfirstlane'):
                        if vw & rd: req = max(req, 1)
                    if P.mn.replace('_e32', '').replace('_e64', '') in TRANS and vw & rd: req = max(req, 1)
                    if 'sdwa' in P.mn and vw & (rd | wr): req = max(req, 1)
                    if sw & rd:
                        req = max(req, 4 if (I.mn.startswith('v_readlane') or I.mn.startswith('v_writelane')) else 2)
                    if isdot and vw & (rd | wr):
                        if I.mn == P.mn:
                            ops = split_ops(I.text.split(';')[0].split(None, 1)[1])
                            ab = set(regs_of(ops[1]) + regs_of(ops[2]))
                            if vw & ab: req = max(req, 3)
                        else:
                            req = max(req, 3)
                if isdot and I.cls in ('vmem', 'ds') and vw & rd: req = max(req, 3)
                if I.cls == 'vmem' and sw & rd: req = max(req, 5)
                if I.cls in ('salu', 'smem') and sw & rd: req = max(req, 4)
            elif P.cls == 'mfma':
                npass = 8 if '32x32' in P.mn else 4
                big = {4: 8, 8: 12}[npass]; ovl = {4: 6, 8: 10}[npass]; war = {4: 3, 8: 7}[npass]
                if I.cls == 'mfma':
                    if pw & set(I.ab): req = max(req, big)
                    if pw & set(I.srcc):
                        same = (I.srcc == P.wr) and (('32x32' in I.mn) == ('32x32' in P.mn))
                        if not same: req = max(req, ovl)
                    elif pw & wr: req = max(req, ovl)
                elif I.cls in ('valu', 'vmem', 'ds'):
                    if pw & (rd | wr): req = max(req, big)
                    if I.cls == 'valu' and set(P.srcc) & wr: req = max(req, war)
            elif P.cls == 'salu':
                if ('m0', 0) in pw and I.cls == 'vmem' and ('m0', 0) in rd: req = max(req, 1)
            elif P.cls == 'vmem':
                if P.wide_store and set(P.wide_store) & wr: req = max(req, 2)
            miss = max(miss, req - dist)
            dist += P.states
            if dist >= 14: break
        return miss

    def raw(self, text):
        self.lines.append(text)

    def __call__(self, text, tag=None):
        for ln in text.split('\n'):
            ln = ln.strip()
            if not ln: continue
            if ln.startswith(';') or ln.startswith('.'):
                self.lines.append(ln); continue
            if ln.endswith(':'):
                self.lines.append(ln); continue
            I = classify(ln)
            m = self.need(I)
            if m > 0:
                self._push(classify(f's_nop {m-1}'))
            self._push(I)
            if I.cls == 'vmem': self.vm.append(tag)
            if I.cls == 'ds': self.lg.append(tag)
            if self.auto and not self._in_side and I.cls == 'valu':
                self._acnt += 1
                if self._acnt >= self.auto:
                    self._acnt = 0
                    self.drain(1)

    def drain(self, n=None):
        self._in_side = True
        while self.side and (n is None or n > 0):
            self.side.pop(0)()
            if n is not None: n -= 1
        self._in_side = False

    def _push(self, I):
        self.lines.append('    ' + I.text)
        self.hist.append(I)
        if len(self.hist) > 20: self.hist.pop(0)
        self.ninstr += 1

    def label(self, base='L'):
        self.nlabel += 1
        return f'{base}_{self.nlabel}'

    def fence_hazards(self):
        self('s_nop 7\ns_nop 3')

    def _after(self, lst, tag):
        idx = max(i for i, t in enumerate(lst) if t == tag)
        return len(lst) - 1 - idx

    def wait_vm(self, tag):
        n = self._after(self.vm, tag)
        self(f's_waitcnt vmcnt({min(n, 63)})')

    def wait_lg(self, tag):
        n = self._after(self.lg, tag)
        self(f's_waitcnt lgkmcnt({min(n, 15)})')

    def wait_both(self, vtag, ltag):
        parts = []
        if vtag is not None: parts.append(f'vmcnt({min(self._after(self.vm, vtag), 63)})')
        if ltag is not None: parts.append(f'lgkmcnt({min(self._after(self.lg, ltag), 15)})')
        if parts: self('s_waitcnt ' + ' '.join(parts))

    def text(self):
        return '\n'.join(self.lines) + '\n'
```

```python
import sys, struct, math
sys.path.insert(0, 'gen')
from emit import Emitter

NAME = 'interleave_layers__sliding_local_dilated__mixer_token_mlp__prompt_kernel'
OUT = [a for a in sys.argv[1:] if not a.startswith('--')][0]
EXP = {}
for a_ in sys.argv[1:]:
    if a_.startswith('--'):
        k_, _, v_ = a_[2:].partition('=')
        EXP[k_] = int(v_) if v_ else 1
STAMPS = 'stamps' in EXP
def P(name, default): return EXP.get(name, default)

def f2u(x): return struct.unpack('<I', struct.pack('<f', x))[0]
def hx(x): return '0x%08x' % (x & 0xffffffff)

WS_FLAG = lambda l, ph: 0x10000 * (1 + l * 4 + ph)
WS_STAT = lambda l: 0x100000 + l * 0x40000
WS_O = lambda l: 0x200000 + l * 0x200000
WS_H2 = lambda l: 0x600000 + l * 0x200000
WS_U = lambda l: 0xA00000 + l * 0x200000
WS_X2 = 0xE00000
WS_DBG = 0x2000000
FSTR = 128

SLOT = 4096
NSLOT = 36
SC = NSLOT * SLOT
LDS_BYTES = SC + 16384
assert LDS_BYTES == 163840
HALO = SC
XS = 24 * SLOT
P1S = 33 * SLOT
EX = P1S
ST_R = P1S + 10240
ST_N = P1S + 10240 + 640
CS_QK = P1S + 11520
CS_V = P1S + 11520 + 256

X0, WQKV, WO, W1, W2, B1, B2, OUTS, WS = 4, 8, 12, 16, 20, 24, 28, 32, 36
def srd(n): return f's[{n}:{n+3}]'
sTAG, sW, sX, sI, sM0 = 's40', 's41', 's42', 's43', 's44'
sTB, sP, sSB, sDT, sDT3, sFT, sKH, sMH = 's45', 's46', 's47', 's48', 's49', 's50', 's51', 's52'
sBQKV, sBWO, sBW1, sBW2 = 's53', 's54', 's55', 's56'
sROT = 's57'
sT0, sT1, sT2, sT3, sT4 = 's60', 's61', 's62', 's63', 's3'
sPAR, sCUR0, sCUR1 = 's[64:65]', 's[66:67]', 's[68:69]'
sJ2, sDIAG = 's[76:77]', 's[78:79]'
sCNT = 's70'
sC1 = 's71'
sXA, sXB, sXH = 's72', 's73', 's74'
sKQ = [f's{84+i}' for i in range(8)]
sKX = [f's{92+i}' for i in range(8)]

vL, vG, vJ, vL16, vXR = 'v1', 'v2', 'v3', 'v4', 'v5'
vDQ, vDO, vD1, vD2 = 'v6', 'v7', 'v8', 'v9'
vA = list(range(10, 22))
vT0, vT1, vT2, vT3 = 'v22', 'v23', 'v24', 'v25'
vTAG = 'v26'
vL8 = 'v27'
ONES = 28
CARRY = 32
SELP0, SELP1, SELC0, SELC1 = 'v40', 'v41', 'v42', 'v43'
NEG = 44
BIAS = 48
XB = 48
vSTAMP = 'v0'

e = Emitter()
def v(n, w=1): return f'v{n}' if w == 1 else f'v[{n}:{n+w-1}]'
def a(n, w=1): return f'a{n}' if w == 1 else f'a[{n}:{n+w-1}]'

nstamp = [0]
def stamp():
    if not STAMPS: return
    au = e.auto; e.auto = 0
    e(f's_memrealtime s[58:59]\ns_waitcnt lgkmcnt(0)\nv_writelane_b32 {vSTAMP}, s58, {nstamp[0]}')
    e.auto = au
    nstamp[0] += 1
def cstamp(idx):
    if not STAMPS: return
    e(f's_memtime s[58:59]\ns_waitcnt lgkmcnt(0)\nv_writelane_b32 {vSTAMP}, s58, {idx}')

def dma(kind, idx, slot, tag):
    if kind == 'qkv':
        kk, seg = divmod(idx, 3)
        off, base, vo, s = seg * 1024, sKQ[kk], vDQ, WQKV
    elif kind == 'wo':
        off, base, vo, s = idx * 32 * 1024, sBWO, vDO, WO
    elif kind == 'w1':
        off, base, vo, s = idx * 32 * 3584, sBW1, vD1, W1
    elif kind == 'w2':
        off, base, vo, s = idx * 32 * 4096, sBW2, vD2, W2
    e(f's_add_u32 m0, {sM0}, {slot * SLOT}')
    e(f's_add_u32 {sT3}, {base}, {off}')
    e(f'buffer_load_dwordx4 {vo}, {srd(s)}, {sT3} offen lds', tag)

STG = {'w1': 80, 'w2': 0}
def stage(kind, idx, reg, tag):
    if kind == 'w1': off, base, vo, s = idx * 32 * 3584, sBW1, vD1, W1
    else: off, base, vo, s = idx * 32 * 4096, sBW2, vD2, W2
    e(f's_add_u32 {sT3}, {base}, {off}')
    e(f'buffer_load_dwordx4 {a(reg, 4)}, {vo}, {srd(s)}, {sT3} offen', tag)

C1 = 2
C2 = (C1 + 32) % 18
def wo_slot(p): return 24 + p if p < 12 else p - 12
def big_slot(c, t, kh): return ((c + t) % 18) * 2 + kh

def q_dma(kind, idx, slot): e.side.append(lambda: dma(kind, idx, slot, 'pf'))
def q_big(kind, t0, t1):
    c, nt = (C1, 32) if kind == 'w1' else (C2, 28)
    for t in range(t0, t1):
        for kh in (0, 1): q_dma(kind, kh * nt + t, big_slot(c, t, kh))
def q_stage(kind, t0=18, t1=None):
    nt = 32 if kind == 'w1' else 28
    for t in range(t0, t1 or nt):
        for kh in (0, 1):
            e.side.append(lambda t=t, kh=kh: stage(kind, kh * nt + t, STG[kind] + ((t - 18) * 2 + kh) * 4, 'pf'))

def publish(flag_base, idx_code):
    e('s_waitcnt vmcnt(0)\ns_barrier')
    L = e.label('pub')
    e(f's_cmp_lg_u32 {sW}, 0\ns_cbranch_scc1 {L}')
    e(idx_code)
    e(f's_mul_i32 {sT0}, {sT0}, {FSTR}\ns_add_u32 {sT0}, {sT0}, {flag_base}')
    e(f'v_mov_b32 {vT0}, 0\ns_mov_b64 exec, 1')
    e(f'buffer_store_dword {vTAG}, {vT0}, {srd(WS)}, {sT0} offen sc1', 'flag')
    e('s_mov_b64 exec, -1')
    e(f'{L}:')

def poll(flag_base, first_code, count):
    L = e.label('poll'); Ld = L + '_d'
    e(f's_cmp_lg_u32 {sW}, 0\ns_cbranch_scc1 {Ld}')
    e(first_code)
    e(f's_mul_i32 {sT0}, {sT0}, {FSTR}\ns_add_u32 {sT0}, {sT0}, {flag_base}')
    if count is None: e(f'v_min_u32 {vT0}, {sT1}, {vL}')
    else: e(f'v_min_u32 {vT0}, {count - 1}, {vL}')
    e(f'v_mul_u32_u24 {vT0}, {FSTR}, {vT0}')
    e(f's_mov_b32 {sCNT}, 30000')
    e(f'{L}:')
    e(f'buffer_load_dword {vT1}, {vT0}, {srd(WS)}, {sT0} offen sc1', 'poll')
    e('s_waitcnt vmcnt(0)')
    e(f'v_cmp_ne_u32 vcc, {vT1}, {vTAG}')
    e(f's_cbranch_vccz {Ld}')
    e(f's_sub_u32 {sCNT}, {sCNT}, 1\ns_cmp_lg_u32 {sCNT}, 0\ns_cbranch_scc1 {L}')
    e(f'{Ld}:')
    e('s_waitcnt vmcnt(0)\ns_barrier')

def prologue():
    e.raw(f'.globl {NAME}\n.p2align 8\n.type {NAME},@function\n{NAME}:')
    e(f's_cmp_lt_u32 s2, 256\ns_cbranch_scc1 L_go\ns_endpgm\nL_go:')
    e('s_load_dwordx16 s[64:79], s[0:1], 0\ns_load_dwordx2 s[80:81], s[0:1], 64\ns_load_dwordx2 s[82:83], s[0:1], 80')
    e(f'v_lshrrev_b32 {vT0}, 6, v0\nv_and_b32 {vL}, 63, v0')
    e(f'v_readfirstlane_b32 {sW}, {vT0}')
    e(f'v_lshrrev_b32 {vG}, 4, {vL}\nv_and_b32 {vJ}, 15, {vL}\nv_lshlrev_b32 {vL16}, 4, {vL}\nv_lshlrev_b32 {vL8}, 3, {vL}')
    e(f's_and_b32 {sX}, s2, 7\ns_lshr_b32 {sI}, s2, 3\ns_lshl_b32 {sM0}, {sW}, 10')
    e(f's_lshr_b32 {sT0}, {sI}, 4\ns_lshl_b32 {sTB}, {sX}, 1\ns_add_u32 {sTB}, {sTB}, {sT0}\ns_and_b32 {sP}, {sI}, 15')
    e(f's_lshl_b32 {sBQKV}, {sP}, 6')
    e(f's_add_u32 {sROT}, {sP}, {sTB}' if P('rot', 1) else f's_mov_b32 {sROT}, 0')
    for i in range(8):
        e(f's_add_u32 {sKX[i]}, {sROT}, {i}\ns_and_b32 {sKX[i]}, {sKX[i]}, 7\ns_mul_i32 {sKQ[i]}, {sKX[i]}, {64*3072}\ns_add_u32 {sKQ[i]}, {sKQ[i]}, {sBQKV}')
    e(f'v_lshrrev_b32 {vT0}, 2, {vL}\ns_lshl_b32 {sT0}, {sW}, 4\nv_add_u32 {vT0}, {sT0}, {vT0}\nv_mul_u32_u24 {vDQ}, 3072, {vT0}')
    e(f'v_lshrrev_b32 {vT0}, 5, {vL}\nv_lshlrev_b32 {vT0}, 1, {vT0}\nv_and_b32 {vT1}, 3, {vL}\nv_xor_b32 {vT0}, {vT0}, {vT1}\nv_lshl_add_u32 {vDQ}, {vT0}, 4, {vDQ}')
    e(f'v_lshrrev_b32 {vT0}, 3, {vL}\nv_and_b32 {vT1}, 7, {vL}\nv_xor_b32 {vT1}, {vT1}, {vT0}\nv_lshlrev_b32 {vT1}, 4, {vT1}\nv_lshl_add_u32 {vXR}, {vT0}, 10, {vT1}')
    if STAMPS: e(f'v_mov_b32 {vSTAMP}, 0')
    code_prefetch()
    e('s_waitcnt lgkmcnt(0)')
    e(f's_load_dword {sTAG}, s[82:83], 0')
    for n, src, size in ((X0, 64, 2097152), (WQKV, 66, 1572864), (WO, 68, 524288), (W1, 72, 7340032), (B1, 74, 3584),
                         (W2, 76, 7340032), (B2, 78, 4096), (OUTS, 80, 2097152), (WS, 82, 0x10000000)):
        e(f's_mov_b32 s{n}, s{src}\ns_and_b32 s{n+1}, s{src+1}, 0xffff\ns_mov_b32 s{n+2}, {size}\ns_mov_b32 s{n+3}, 0x20000')

def code_prefetch():
    if not P('cpf', 1): return
    e(f's_getpc_b64 s[58:59]')
    e.raw('L_pc:')
    e(f's_sub_u32 s58, s58, L_pc-{NAME}\ns_subb_u32 s59, s59, 0')
    e(f's_lshl_b32 {sT0}, {sI}, 2\ns_add_u32 {sT0}, {sT0}, {sW}\ns_and_b32 {sT0}, {sT0}, 7\ns_lshl_b32 {sT0}, {sT0}, 13')
    e(f'v_lshlrev_b32 {vT0}, 7, {vL}\nv_add_u32 {vT0}, {sT0}, {vT0}\nv_min_u32 {vT0}, L_end-{NAME}-4, {vT0}')
    e(f'global_load_dword a253, {vT0}, s[58:59]', 'pf')

def late_setup():
    e(f's_lshr_b32 {sT0}, {sI}, 3\ns_lshl_b32 {sSB}, {sX}, 2\ns_add_u32 {sSB}, {sSB}, {sT0}\ns_and_b32 {sDT}, {sI}, 7')
    e(f's_and_b32 {sT0}, {sX}, 1\ns_lshl_b32 {sT0}, {sT0}, 2\ns_and_b32 {sDT3}, {sI}, 3\ns_add_u32 {sDT3}, {sDT3}, {sT0}')
    e(f's_lshr_b32 {sT0}, {sX}, 1\ns_mul_i32 {sT0}, {sT0}, 7\ns_lshr_b32 {sFT}, {sI}, 2\ns_add_u32 {sFT}, {sFT}, {sT0}')
    e(f's_min_u32 {sFT}, {sFT}, 27')
    e(f's_lshr_b32 {sKH}, {sW}, 1\ns_and_b32 {sMH}, {sW}, 1')
    e(f's_lshl_b32 {sBWO}, {sDT}, 7\ns_lshl_b32 {sBW1}, {sFT}, 7\ns_lshl_b32 {sBW2}, {sSB}, 7')
    e(f'v_lshrrev_b32 {vT0}, 3, {vL}\ns_lshl_b32 {sT0}, {sW}, 3\nv_add_u32 {vT0}, {sT0}, {vT0}')
    e(f'v_and_b32 {vT1}, 7, {vL}\nv_lshlrev_b32 {vT2}, 1, {vG}\nv_xor_b32 {vT1}, {vT1}, {vT2}\nv_lshlrev_b32 {vT1}, 4, {vT1}')
    e(f'v_lshl_add_u32 {vDO}, {vT0}, 10, {vT1}\nv_lshl_add_u32 {vD2}, {vT0}, 12, {vT1}')
    e(f'v_mul_u32_u24 {vD1}, 3584, {vT0}\nv_add_u32 {vD1}, {vD1}, {vT1}')
    for i in range(4): e(f'v_mov_b32 {v(ONES + i)}, 0x3f803f80')
    e('s_waitcnt lgkmcnt(0)')
    e(f's_mul_i32 {sTAG}, {sTAG}, 1664525\ns_add_u32 {sTAG}, {sTAG}, 1013904223')
    e(f'v_mov_b32 {vTAG}, {sTAG}')
    e(f'v_and_b32 {vT0}, 1, {vJ}\nv_cmp_eq_u32 {sPAR}, 1, {vT0}')
    e(f'v_lshl_add_u32 {vT1}, {vG}, 2, {vT0}')
    e(f'v_cmp_le_u32 {sCUR0}, {vT1}, {vJ}\nv_add_u32 {vT1}, 2, {vT1}\nv_cmp_le_u32 {sCUR1}, {vT1}, {vJ}')
    e(f'v_and_b32 {vT0}, 2, {vJ}\nv_cmp_eq_u32 {sJ2}, 2, {vT0}\nv_lshrrev_b32 {vT0}, 2, {vJ}\nv_cmp_eq_u32 {sDIAG}, {vT0}, {vG}')
    e(f'v_mov_b32 {vT2}, 0x0c0c0c0c')
    for u, (sc, sp, cur) in enumerate(((SELC0, SELP0, sCUR0), (SELC1, SELP1, sCUR1))):
        lo = 0x0c0c0000 | ((2*u+1) << 8) | (2*u)
        hi = ((2*u+1) << 24) | ((2*u) << 16) | 0x0c0c
        e(f'v_mov_b32 {vT0}, {hx(lo)}\nv_mov_b32 {vT1}, {hx(hi)}\nv_cndmask_b32 {vT0}, {vT0}, {vT1}, {sPAR}')
        e(f'v_cndmask_b32 {sc}, {vT2}, {vT0}, {cur}\nv_cndmask_b32 {sp}, {vT0}, {vT2}, {cur}')
    e(f's_or_b32 {sT0}, {sTB}, {sW}\ns_cmp_eq_u32 {sT0}, 0\ns_cselect_b32 {sT0}, {hx(f2u(-1e30))}, 0')
    for i in range(4): e(f'v_mov_b32 {v(NEG + i)}, {sT0}')

XF = 128
ACC1 = 64
def acc1(t, c): return ACC1 + (t * 6 + c) * 4
HA, HB = 112, 116
SUM0, SQ0, SUM1, SQ1 = 120, 121, 122, 123

def p1_tr(dst, kt, seg, h, avs):
    slot = (kt >> 1) * 3 + seg
    st = slot // 12
    imm = (slot - st * 12) * SLOT + (kt & 1) * 2048 + h * 256
    return f'ds_read_b64_tr_b16 {dst}, v{avs[st]} offset:{imm}'

def ln_stats(vs, vq, vr, vn, t0, double=False):
    e(f'v_mul_f32 {vs}, {hx(f2u(1/512))}, {vs}')
    e(f'v_mul_f32 {vq}, {hx(f2u(1/512))}, {vq}')
    e(f'v_fma_f32 {vq}, -{vs}, {vs}, {vq}')
    e(f'v_max_f32 {vq}, 0, {vq}')
    e(f'v_add_f32 v{t0}, {hx(f2u(1e-5))}, {vq}')
    e(f'v_rsq_f32 {vr}, v{t0}')
    if double:
        e(f'v_mul_f32 v{t0}, {vr}, {vr}')
        e(f'v_mul_f32 v{t0}, v{t0}, {vq}')
        e(f'v_add_f32 v{t0}, {hx(f2u(1e-5))}, v{t0}')
        e(f'v_rsq_f32 v{t0}, v{t0}')
        e(f'v_mul_f32 {vr}, {vr}, v{t0}')
    e(f'v_mul_f32 {vn}, {vs}, {vr}')
    e(f'v_sub_f32 {vn}, 0, {vn}')

def warm_touch():
    def w1t(q):
        e(f's_lshl_b32 {sT4}, {sI}, 2\ns_add_u32 {sT4}, {sT4}, {sW}\ns_lshl_b32 {sT4}, {sT4}, 4\ns_add_u32 {sT4}, {sT4}, {8*q}\ns_mul_i32 {sT4}, {sT4}, 3584')
        e(f's_lshr_b32 {sT3}, {sX}, 1\ns_mul_i32 {sT3}, {sT3}, 896\ns_add_u32 {sT4}, {sT4}, {sT3}')
        e(f'buffer_load_dword a{250+q}, v{vA[10]}, {srd(W1)}, {sT4} offen', 'pf')
    def w2t():
        e(f's_lshl_b32 {sT4}, {sI}, 2\ns_add_u32 {sT4}, {sT4}, {sW}\ns_mul_i32 {sT4}, {sT4}, {14*4096}\ns_lshl_b32 {sT3}, {sX}, 9\ns_add_u32 {sT4}, {sT4}, {sT3}')
        e(f'buffer_load_dword a252, v{vA[11]}, {srd(W2)}, {sT4} offen', 'pf')
    def setup():
        e(f'v_lshrrev_b32 {vT0}, 3, {vL}\nv_mul_u32_u24 {vT0}, 3584, {vT0}\nv_and_b32 {vT1}, 7, {vL}\nv_min_u32 {vT1}, 6, {vT1}\nv_lshl_add_u32 v{vA[10]}, {vT1}, 7, {vT0}')
        e(f'v_lshrrev_b32 {vT0}, 2, {vL}\nv_min_u32 {vT0}, 13, {vT0}\nv_lshlrev_b32 {vT0}, 12, {vT0}\nv_and_b32 {vT1}, 3, {vL}\nv_lshl_add_u32 v{vA[11]}, {vT1}, 7, {vT0}')
    return setup, [lambda: w1t(0), lambda: w1t(1), w2t]

def phase1(l):
    first = l == 0
    def addr_setup():
        e(f'v_lshrrev_b32 {vT0}, 2, {vL}\nv_and_b32 {vT0}, 3, {vT0}\nv_lshl_add_u32 {vT0}, {vG}, 3, {vT0}\nv_lshlrev_b32 {vT0}, 6, {vT0}')
        e(f'v_and_b32 {vT1}, 3, {vL}\nv_lshl_add_u32 {vT0}, {vT1}, 3, {vT0}')
        e(f'v_and_b32 {vT1}, 1, {vG}\nv_lshl_add_u32 v{vA[0]}, {vT1}, 5, {vT0}')
        e(f'v_add_u32 v{vA[1]}, {12*SLOT}, v{vA[0]}')
        e(f'v_xor_b32 v{vA[2]}, 32, v{vA[0]}\nv_xor_b32 v{vA[3]}, 32, v{vA[1]}')
        e(f's_lshl_b32 {sT0}, {sMH}, 5\nv_xor_b32 v{vA[4]}, {sT0}, v{vA[0]}\nv_xor_b32 v{vA[5]}, {sT0}, v{vA[1]}')
        if first:
            e(f'v_and_b32 {vT0}, 7, {vJ}\nv_xor_b32 {vT0}, {vT0}, {vG}\nv_lshlrev_b32 {vT0}, 4, {vT0}\nv_lshl_add_u32 {vT0}, {vJ}, 7, {vT0}')
            e(f's_mul_i32 {sT0}, {sW}, {3*SLOT}\ns_add_u32 {sT0}, {sT0}, {XS}')
            e(f'v_add_u32 v{vA[6]}, {sT0}, {vT0}\nv_xor_b32 v{vA[7]}, 64, v{vA[6]}')
            e(f'v_add_u32 v{vA[8]}, {HALO}, {vT0}\nv_xor_b32 v{vA[9]}, 64, v{vA[8]}')
            e(f'v_add_u32 {vT3}, {sT0}, {vL16}')
            e(f'v_lshrrev_b32 {vT0}, 3, {vL}\nv_lshlrev_b32 {vT0}, 11, {vT0}\nv_and_b32 {vT1}, 7, {vL}\nv_lshl_add_u32 {vT0}, {vT1}, 4, {vT0}\nv_add_u32 {vT0}, {HALO}, {vT0}')
        else:
            e(f'v_add_u32 v{vA[8]}, {HALO}, {vL16}\nv_add_u32 v{vA[9]}, 1024, v{vA[8]}')
            e(f's_lshl_b32 {sT0}, {sW}, 12\nv_add_u32 {vT3}, {sT0}, v{vA[8]}')
            e(f'v_lshlrev_b32 {vT0}, 8, {vL}\nv_add_u32 {vT0}, {HALO}, {vT0}')
        e(f'ds_write_b128 {vT0}, {v(ONES, 4)}', 'ones')
    if not first:
        addr_setup()
        e.drain()
        poll(WS_FLAG(0, 3), f's_lshl_b32 {sT0}, {sTB}, 4\ns_sub_u32 {sT0}, {sT0}, 8\ns_max_i32 {sT0}, {sT0}, 0\n'
             f's_cmp_eq_u32 {sTB}, 0\ns_cselect_b32 {sT1}, 15, 23', None)
    stamp()
    if first: cstamp(62)
    xbase = 0 if first else WS_X2
    e(f's_lshl_b32 {sXA}, {sTB}, 3\ns_lshl_b32 {sT1}, {sW}, 1\ns_add_u32 {sXA}, {sXA}, {sT1}\ns_lshl_b32 {sXA}, {sXA}, 14')
    if xbase: e(f's_add_u32 {sXA}, {sXA}, {xbase}')
    e(f's_lshl_b32 {sXH}, {sTB}, 3\ns_sub_u32 {sXH}, {sXH}, 1\ns_max_i32 {sXH}, {sXH}, 0\ns_lshl_b32 {sXH}, {sXH}, 14')
    if xbase: e(f's_add_u32 {sXH}, {sXH}, {xbase}')

    if first:
        def xreg(kk, i): return XF + (kk * 4 + i) * 4
        def xload(kk, i):
            if i == 0: e(f's_lshl_b32 {sXB}, {sKX[kk]}, 7\ns_add_u32 {sXB}, {sXB}, {sXA}')
            else: e(f's_add_u32 {sXB}, {sXB}, 8192')
            e(f'buffer_load_dwordx4 {v(xreg(kk, i), 4)}, {vXR}, {srd(X0)}, {sXB} offen', ('x', kk))
        def frag(t, kt): return XB + (kt & 1) * 8 + 4 * t
        def halo_dma(n):
            kkl, i = n >> 1, n & 1
            e(f's_lshl_b32 {sT4}, {sW}, 1\ns_add_u32 {sT4}, {sT4}, {sROT}\ns_add_u32 {sT4}, {sT4}, {kkl}\ns_and_b32 {sT4}, {sT4}, 7\ns_lshl_b32 {sT4}, {sT4}, 7')
            e(f's_add_u32 {sT4}, {sT4}, {sXH}\ns_add_u32 {sT4}, {sT4}, {8192*i}')
            e(f's_lshl_b32 {sT3}, {sW}, 12\ns_add_u32 m0, {sT3}, {HALO + kkl*2048 + i*1024}')
            if i == 0: e('s_mov_b32 exec_lo, 0xffffff00')
            e(f'buffer_load_dwordx4 {vXR}, {srd(X0)}, {sT4} offen lds', 'halo')
            if i == 0: e('s_mov_b32 exec_lo, -1')
        loads = []
        for kk in range(8):
            loads += [lambda kk=kk, i=i: xload(kk, i) for i in range(4)]
            loads += [lambda kk=kk, seg=seg: dma('qkv', kk*3+seg, kk*3+seg, ('qkv', kk)) for seg in range(3)]
        lead = P('p1lead0', 4) * 7
        for f in loads[:lead]: f()
        loads = loads[lead:]
        late_setup()
        addr_setup()
        wsetup, wt = warm_touch()
        wsetup()
        loads += [lambda n=n: halo_dma(n) for n in range(4)]
        def res_load(ct):
            if ct == 0:
                e(f's_lshl_b32 {sXB}, {sSB}, 2\ns_add_u32 {sXB}, {sXB}, {sW}\ns_lshl_b32 {sXB}, {sXB}, 14\ns_add_u32 {sXB}, {sXB}, {sBWO}')
                e(f'v_lshlrev_b32 {vT0}, 10, {vJ}\nv_lshl_add_u32 {vT0}, {vG}, 3, {vT0}')
            e(f'buffer_load_dwordx2 {v(CARRY + 2*ct, 2)}, {vT0}, {srd(X0)}, {sXB} offen offset:{ct*32}', 'res')
        loads += [lambda ct=ct: res_load(ct) for ct in range(4)]
        if P('warm', 1): loads += wt
        per_step = 4
    else:
        def frag(t, kt): return XF + (kt * 2 + t) * 4
        def xload(kt, t):
            if t == 0 and kt % 2 == 0: e(f's_lshl_b32 {sXB}, {sKX[kt >> 1]}, 11\ns_add_u32 {sXB}, {sXB}, {sXA}\ns_add_u32 {sT2}, {sXB}, 16384')
            e(f'buffer_load_dwordx4 {v(frag(t, kt), 4)}, {vL16}, {srd(WS)}, {(sXB, sT2)[t]} offen offset:{(kt & 1)*1024} sc1', ('x', kt))
        def halo_load(n):
            e(f's_lshl_b32 {sT4}, {sW}, 1\ns_add_u32 {sT4}, {sT4}, {sROT}\ns_add_u32 {sT4}, {sT4}, {n >> 1}\ns_and_b32 {sT4}, {sT4}, 7\ns_lshl_b32 {sT4}, {sT4}, 11')
            e(f's_add_u32 {sT4}, {sT4}, {sXH}')
            e(f'buffer_load_dwordx4 {a(48 + 4*n, 4)}, {vL16}, {srd(WS)}, {sT4} offen offset:{(n & 1)*1024} sc1', 'halo')
        loads = [lambda kt=kt, t=t: xload(kt, t) for kt in range(16) for t in (0, 1)]
        lead = P('p1lead1', 6) * 2
        for f in loads[:lead]: f()
        loads = loads[lead:]
        loads += [lambda n=n: halo_load(n) for n in range(4)]
        q_stage('w1', 18, 18 + P('p1stage', 7))
        loads += e.side; e.side = []
        per_step = 3

    NB = 12
    DW = P('p1dw', 5)
    def wreads(ph):
        kt, c = divmod(ph, 6)
        seg, ct = c >> 1, c & 1
        return [p1_tr(a((ph % NB)*4 + 2*h, 2), kt, seg, h, (vA[2*ct], vA[2*ct+1])) for h in (0, 1)]
    def xreads(kt):
        return [f'ds_read_b128 {v(frag(t, kt), 4)}, v{vA[6 + (kt & 1)]} offset:{((kt >> 1) % 3)*SLOT + t*2048}' for t in (0, 1)]
    def xwrite(kk, i):
        return f'ds_write_b128 {vT3}, {v(xreg(kk, i), 4)} offset:{(kk % 3)*SLOT + i*1024}'
    def gate(kk):
        if first:
            e.wait_vm(('qkv', kk)); e('s_barrier')
    if first:
        e.wait_vm(('x', 0))
        for i in range(4): e(xwrite(0, i), 'xw')
        for r in xreads(0): e(r, ('xf', 0))
        e.wait_vm(('x', 1))
        for i in range(2): e(xwrite(1, i), 'xw')
    gate(0)
    for ph in range(DW):
        for r in wreads(ph): e(r, ('f', ph))
    GA = 192
    lpos = [int(i * 16 / per_step) + 1 for i in range(per_step)]
    for kt in range(16):
        n = 0
        def slot_ops():
            nonlocal n
            if n in lpos and loads: loads.pop(0)()
            n += 1
        if first: e.wait_lg(('xf', kt))
        else: e.wait_vm(('x', kt))
        for t in (0, 1):
            x = v(frag(t, kt), 4)
            e(f'v_mfma_f32_16x16x32_bf16 {a(GA+4*t,4)}, {x}, {x}, {"0" if kt == 0 else a(GA+4*t,4)}')
            if first and kt < 15: e(xreads(kt+1)[t], ('xf', kt+1))
            slot_ops()
        for c in range(6):
            ph = kt * 6 + c
            nx = ph + DW
            if nx < 96 and nx % 12 == 0: gate(nx // 12)
            e.wait_lg(('f', ph))
            for t in (0, 1):
                A, B = a((ph % NB)*4, 4), v(frag(t, kt), 4)
                if c >= 4: A, B = B, A
                ac = v(acc1(t, c), 4)
                e(f'v_mfma_f32_16x16x32_bf16 {ac}, {A}, {B}, {"0" if kt == 0 else ac}')
                if nx < 96: e(wreads(nx)[t], ('f', nx))
                slot_ops()
        kw, half = (kt + 3) // 2, (kt + 1) & 1
        if first and kw < 8: e.wait_vm(('x', kw))
        for t in (0, 1):
            x = v(frag(t, kt), 4)
            e(f'v_mfma_f32_16x16x32_bf16 {a(GA+8+4*t,4)}, {v(ONES,4)}, {x}, {"0" if kt == 0 else a(GA+8+4*t,4)}')
            if first and kw < 8: e(xwrite(kw, 2*half + t), 'xw')
            slot_ops()
    while loads: loads.pop(0)()
    stamp()
    e.wait_vm('halo')
    if not first:
        e('s_mov_b32 exec_lo, 0xfffefffe\ns_mov_b32 exec_hi, 0xfffefffe')
        for n in range(4): e(f'ds_write_b128 {vT3}, {a(48 + 4*n, 4)} offset:{1024*n}', 'hw')
        e('s_mov_b64 exec, -1')
    e('s_waitcnt lgkmcnt(0)\ns_barrier')
    if first:
        for p in range(9): q_dma('wo', p, wo_slot(p))
        e.drain(P('wo_early', 3))
    def hx_read(dst, kt): return f'ds_read_b128 {dst}, v{vA[8 + (kt & 1)]} offset:{(kt >> 1)*2048}'
    Lv, Lj = e.label('halo_v'), e.label('halo_j')
    e(f's_cmp_lg_u32 {sKH}, 0\ns_cbranch_scc1 {Lv}')
    hv = (vA[4], vA[5])
    DEP = 3
    def hk_reads(kt):
        b = (kt % 4) * 12
        e(hx_read(a(b + 8, 4), kt), ('hk', kt))
        for i, seg in enumerate((1, 0)):
            for h in (0, 1): e(p1_tr(a(b + 4*i + 2*h, 2), kt, seg, h, hv), ('hk', kt))
    for kt in range(DEP): hk_reads(kt)
    for kt in range(16):
        e.wait_lg(('hk', kt))
        b = (kt % 4) * 12
        e(f'v_mfma_f32_16x16x32_bf16 {v(HA,4)}, {a(b,4)}, {a(b+8,4)}, {"0" if kt == 0 else v(HA,4)}')
        e(f'v_mfma_f32_16x16x32_bf16 {v(HB,4)}, {a(b+4,4)}, {a(b+8,4)}, {"0" if kt == 0 else v(HB,4)}')
        if kt + DEP < 16: hk_reads(kt + DEP)
    e(f's_lshl_b32 {sT0}, {sMH}, 6\nv_lshlrev_b32 {vT0}, 4, {vG}\nv_add_u32 {vT0}, {sT0}, {vT0}\nv_add_u32 {vT0}, {CS_QK}, {vT0}')
    e('s_mov_b32 exec_lo, 0x00010001\ns_mov_b32 exec_hi, 0x00010001')
    e(f'ds_write_b128 {vT0}, {v(HB,4)}\nds_write_b128 {vT0}, {v(HA,4)} offset:128')
    e(f's_mov_b64 exec, -1\ns_branch {Lj}')
    e(f'{Lv}:')
    DEP = 5
    def hv_reads(kt):
        b = (kt % 6) * 8
        e(hx_read(a(b + 4, 4), kt), ('hv', kt))
        for h in (0, 1): e(p1_tr(a(b + 2*h, 2), kt, 2, h, hv), ('hv', kt))
    for kt in range(DEP): hv_reads(kt)
    for kt in range(16):
        e.wait_lg(('hv', kt))
        b = (kt % 6) * 8
        e(f'v_mfma_f32_16x16x32_bf16 {v(HB,4)}, {a(b+4,4)}, {a(b+4,4)}, {"0" if kt == 0 else v(HB,4)}')
        e(f'v_mfma_f32_16x16x32_bf16 {v(HA,4)}, {a(b+4,4)}, {a(b,4)}, {"0" if kt == 0 else v(HA,4)}')
        if kt + DEP < 16: hv_reads(kt + DEP)
    e(f's_lshl_b32 {sT0}, {sMH}, 10\ns_add_u32 {sT0}, {sT0}, {EX}\nv_add_u32 {vT0}, {sT0}, {vL16}')
    e(f'v_lshlrev_b32 {vT1}, 4, {vJ}\nv_add_u32 {vT1}, {sT0}, {vT1}')
    e(f'v_lshrrev_b32 {vT2}, 2, {vJ}\nv_lshl_add_u32 {vT2}, {vT2}, 8, {vT1}\nv_and_b32 {vT3}, 3, {vJ}\nv_lshl_add_u32 {vT2}, {vT3}, 2, {vT2}')
    e(f'ds_write_b128 {vT0}, {v(HB,4)}')
    e(f'ds_read_b32 v124, {vT1}\nds_read_b32 v125, {vT2}')
    e(f's_lshl_b32 {sT0}, {sMH}, 6\ns_add_u32 {sT0}, {sT0}, {CS_V}\nv_lshlrev_b32 {vT0}, 2, {vJ}\nv_add_u32 {vT1}, {sT0}, {vT0}')
    e(f's_mov_b64 exec, 0xffff\nds_write_b32 {vT1}, v{HA}\ns_mov_b64 exec, -1')
    e('s_waitcnt lgkmcnt(0)')
    ln_stats('v124', 'v125', 'v126', 'v127', 22 + 2)
    e(f'v_add_u32 {vT0}, {ST_R}, {vT0}')
    e(f'ds_write_b32 {vT0}, v126\nds_write_b32 {vT0}, v127 offset:{ST_N - ST_R}')
    e(f'{Lj}:')
    e('s_nop 1')
    stamp()
    e.auto = P('auto1', 8)
    GT = 136
    for i in range(8): e(f'v_accvgpr_read_b32 v{GT+i}, a{GA+i}')
    e(f'v_accvgpr_read_b32 v{SUM0}, a{GA+8}\nv_accvgpr_read_b32 v{SUM1}, a{GA+12}')
    for t, sq in ((0, SQ0), (1, SQ1)):
        b = GT + 4*t
        e(f'v_cndmask_b32 v{b}, v{b}, v{b+1}, {sPAR}\nv_cndmask_b32 v{b+2}, v{b+2}, v{b+3}, {sPAR}')
        e(f'v_cndmask_b32 v{b}, v{b}, v{b+2}, {sJ2}\nv_cndmask_b32 v{sq}, 0, v{b}, {sDIAG}')
    e(f'v_permlane32_swap_b32 v{SUM0}, v{SUM1}\nv_permlane32_swap_b32 v{SQ0}, v{SQ1}')
    e(f'v_add_f32 v{SQ0}, v{SQ0}, v{SQ1}')
    e(f'v_mov_b32 v{SQ1}, v{SQ0}')
    e(f'v_permlane16_swap_b32 v{SQ0}, v{SQ1}')
    e(f'v_add_f32 v{SQ0}, v{SQ0}, v{SQ1}')
    R0, N0, R1, N1 = 128, 129, 130, 131
    ln_stats(f'v{SUM0}', f'v{SQ0}', f'v{R0}', f'v{N0}', SUM1)
    e(f'v_lshrrev_b32 {vT0}, 1, {vG}\nv_lshl_add_u32 {vT0}, {vT0}, 4, {vJ}\ns_lshl_b32 {sT0}, {sW}, 7\ns_add_u32 {sT0}, {sT0}, {ST_R + 64}')
    e(f'v_lshlrev_b32 {vT0}, 2, {vT0}\nv_add_u32 {vT0}, {sT0}, {vT0}')
    e(f'ds_write_b32 {vT0}, v{R0}\nds_write_b32 {vT0}, v{N0} offset:{ST_N - ST_R}')
    e(f'v_mov_b32 v{R1}, v{R0}\nv_mov_b32 v{N1}, v{N0}')
    e(f'v_permlane32_swap_b32 v{R0}, v{R1}\nv_permlane32_swap_b32 v{N0}, v{N1}')
    e(f'v_lshlrev_b32 {vT1}, 4, {vG}\nv_add_u32 {vT2}, {sT0}, {vT1}')
    e(f'v_lshlrev_b32 {vT3}, 2, {vJ}')
    e(f'v_add_u32 {vT0}, {P1S}, {vT1}\nv_add_u32 {vT3}, {P1S}, {vT3}')
    e('s_waitcnt lgkmcnt(0)\ns_barrier')
    CSQ = 132
    CSV = 148
    HRc, HNc = 150, 151
    RR, NR = 152, 160
    HRr, HNr = 168, 172
    for i in (2, 3, 0, 1): e(f'ds_read_b128 {v(CSQ + 4*i, 4)}, {vT0} offset:{CS_QK - P1S + 64*i}', ('ep0', i))
    for h in range(2): e(f'ds_read_b32 v{CSV + h}, {vT3} offset:{CS_V - P1S + 64*h}', 'ep2')
    for t in (1, 0):
        e(f'ds_read_b128 {v(RR + 4*t, 4)}, {vT2} offset:{64*t}', 'ep2' if t else 'ep3')
        e(f'ds_read_b128 {v(NR + 4*t, 4)}, {vT2} offset:{64*t + ST_N - ST_R}', 'ep2' if t else 'ep3')
    e(f'ds_read_b32 v{HRc}, {vT3} offset:{ST_R - P1S}\nds_read_b32 v{HNc}, {vT3} offset:{ST_N - P1S}', 'ep3')
    e(f'ds_read_b128 {v(HRr,4)}, {vT0} offset:{ST_R - P1S}\nds_read_b128 {v(HNr,4)}, {vT0} offset:{ST_N - P1S}', 'ep3')
    for p in range(12, 16): q_dma('wo', p, wo_slot(p))
    q_big('w1', 0, 10)
    QP = 176
    KP = 184
    VP = 196
    for t in (1, 0):
        for c in range(4):
            for r in range(4): e(f'v_mul_f32 v{acc1(t,c)+r}, v{acc1(t,c)+r}, v{(R0, R1)[t]}')
    for t in (1, 0):
        N = (N0, N1)[t]
        for c in (2, 3, 0, 1):
            ac = acc1(t, c)
            if t == 1: e.wait_lg(('ep0', c))
            for r in range(4):
                e(f'v_fmac_f32 v{ac+r}, v{N}, v{CSQ + 4*c + r}')
            dst = QP + (t*2 + c)*2 if c < 2 else KP + (c-2)*6 + 2*(t+1)
            e(f'v_cvt_pk_bf16_f32 v{dst}, v{ac}, v{ac+1}\nv_cvt_pk_bf16_f32 v{dst+1}, v{ac+2}, v{ac+3}')
        if t == 1: e.wait_lg('ep2')
        for h in (0, 1):
            ac = acc1(t, 4 + h)
            for r in range(4):
                e(f'v_mul_f32 v{ac+r}, v{ac+r}, v{RR + 4*t + r}')
            for r in range(4):
                e(f'v_fmac_f32 v{ac+r}, v{NR + 4*t + r}, v{CSV + h}')
            dst = VP + h*6 + 2*(t+1)
            e(f'v_cvt_pk_bf16_f32 v{dst}, v{ac}, v{ac+1}\nv_cvt_pk_bf16_f32 v{dst+1}, v{ac+2}, v{ac+3}')
        if t == 1:
            e(f's_lshl_b32 {sT0}, {sW}, 11\ns_add_u32 {sT0}, {sT0}, {EX}\nv_add_u32 {vT0}, {sT0}, {vL8}')
            for i, reg in enumerate((KP + 4, KP + 10, VP + 4, VP + 10)):
                e(f'ds_write_b64 {vT0}, {v(reg, 2)} offset:{2048 + 512*i}', 'exw')
            e.wait_lg('ep3')
            au = e.auto; e.auto = 0
            La, Lb = e.label('hn_v'), e.label('hn_j')
            e(f's_cmp_lg_u32 {sKH}, 0\ns_cbranch_scc1 {La}')
            for r in range(4): e(f'v_mov_b32_dpp v{HB+r}, v{HA+r} row_newbcast:0 row_mask:0xf bank_mask:0xf')
            for r in range(4): e(f'v_mul_f32 v{HA+r}, v{HA+r}, v{HRc}')
            for r in range(4): e(f'v_fmac_f32 v{HA+r}, v{HNc}, v{HB+r}')
            e(f's_branch {Lb}')
            e(f'{La}:')
            e(f's_cmp_lg_u32 {sMH}, 0\ns_cselect_b64 vcc, -1, 0\nv_cndmask_b32 v{HB}, v{CSV}, v{CSV+1}, vcc')
            for r in range(4): e(f'v_mul_f32 v{HA+r}, v{HA+r}, v{HRr+r}')
            for r in range(4): e(f'v_fmac_f32 v{HA+r}, v{HNr+r}, v{HB}')
            e(f'{Lb}:')
            e(f'v_cvt_pk_bf16_f32 v{HB}, v{HA}, v{HA+1}\nv_cvt_pk_bf16_f32 v{HB+1}, v{HA+2}, v{HA+3}')
            e(f's_lshl_b32 {sT1}, {sW}, 9\ns_add_u32 {sT1}, {sT1}, {EX}\nv_add_u32 {vT1}, {sT1}, {vL8}')
            e(f'ds_write_b64 {vT1}, {v(HB, 2)}', 'exw')
            e.auto = au
    e('s_waitcnt lgkmcnt(0)\ns_barrier')
    e.auto = P('auto2', 0)
    for i, reg in enumerate((KP, KP + 6, VP, VP + 6)):
        e(f'ds_read_b64 {v(reg, 2)}, {vT0} offset:{512*i}', 'exr')
    stamp()
    SP, SCU = 64, 80
    combos = [(1, 0), (1, 1), (0, 0), (0, 1)]
    for n, (t, h) in enumerate(combos):
        q = v(QP + (t*2 + h)*2, 2)
        e(f'v_mfma_f32_16x16x16_bf16 {v(SCU + 4*n, 4)}, {v(KP + h*6 + 2*(t+1), 2)}, {q}, 0')
        if t == 1: e(f'v_mfma_f32_16x16x16_bf16 {v(SP + 4*n, 4)}, {v(KP + h*6 + 2*t, 2)}, {q}, 0')
    e.wait_lg('exr')
    for n, (t, h) in enumerate(combos):
        q = v(QP + (t*2 + h)*2, 2)
        if t == 0: e(f'v_mfma_f32_16x16x16_bf16 {v(SP + 4*n, 4)}, {v(KP + h*6 + 2*t, 2)}, {q}, {v(NEG,4)}')
    SV = 96
    MX = 104
    for n in range(4):
        for u in range(2):
            e(f'v_cndmask_b32 v{SCU+4*n+2*u}, v{SCU+4*n+2*u}, v{SCU+4*n+2*u+1}, {sPAR}')
            e(f'v_cndmask_b32 v{SP+4*n+2*u}, v{SP+4*n+2*u}, v{SP+4*n+2*u+1}, {sPAR}')
        for u in range(2):
            e(f'v_cndmask_b32 v{SV+2*n+u}, v{SP+4*n+2*u}, v{SCU+4*n+2*u}, {(sCUR0, sCUR1)[u]}')
        e(f'v_max_f32 v{MX+n}, v{SV+2*n}, v{SV+2*n+1}')
    e(f'v_permlane32_swap_b32 v{MX}, v{MX+1}\nv_permlane32_swap_b32 v{MX+2}, v{MX+3}')
    e(f'v_max_f32 v{MX}, v{MX}, v{MX+1}\nv_max_f32 v{MX+2}, v{MX+2}, v{MX+3}')
    e(f'v_permlane16_swap_b32 v{MX}, v{MX+2}\nv_max_f32 v{MX}, v{MX}, v{MX+2}')
    cexp = 0.25 * math.log2(math.e)
    e(f's_mov_b32 {sC1}, {hx(f2u(cexp))}')
    e(f'v_mul_f32 v{MX}, {hx(f2u(-cexp))}, v{MX}')
    e(f'v_mov_b32 v{MX+2}, v{MX}\nv_permlane16_swap_b32 v{MX}, v{MX+2}')
    e(f'v_mov_b32 v{MX+1}, v{MX}\nv_mov_b32 v{MX+3}, v{MX+2}')
    e(f'v_permlane32_swap_b32 v{MX}, v{MX+1}\nv_permlane32_swap_b32 v{MX+2}, v{MX+3}')
    PB = 64
    OA = 80
    SMA = 128
    for n in range(4):
        for u in range(2): e(f'v_fma_f32 v{SV+2*n+u}, v{SV+2*n+u}, {sC1}, v{MX+n}')
    for n in range(4):
        for u in range(2): e(f'v_exp_f32 v{SV+2*n+u}, v{SV+2*n+u}')
    for n in range(4): e(f'v_cvt_pk_bf16_f32 v{SV+2*n}, v{SV+2*n}, v{SV+2*n+1}')
    for n, (t, h) in enumerate(combos):
        for i, sel in enumerate((SELP0, SELP1, SELC0, SELC1)):
            e(f'v_perm_b32 v{PB+4*n+i}, v{SV+2*n}, v{SV+2*n}, {sel}')
        if n:
            m, (t2, h2) = n - 1, combos[n-1]
            e(f'v_mfma_f32_16x16x32_bf16 {v(SMA+4*m,4)}, {v(ONES,4)}, {v(PB+4*m,4)}, 0')
            e(f'v_mfma_f32_16x16x32_bf16 {v(OA+4*m,4)}, {v(VP + h2*6 + 2*t2, 4)}, {v(PB+4*m,4)}, 0')
    e(f's_lshl_b32 {sT0}, {sTB}, 3\ns_lshl_b32 {sT1}, {sW}, 1')
    e(f'v_mfma_f32_16x16x32_bf16 {v(SMA+12,4)}, {v(ONES,4)}, {v(PB+12,4)}, 0')
    e(f'v_mfma_f32_16x16x32_bf16 {v(OA+12,4)}, {v(VP + 6, 4)}, {v(PB+12,4)}, 0')
    e(f's_add_u32 {sT0}, {sT0}, {sT1}\ns_lshl_b32 {sT0}, {sT0}, 4\ns_add_u32 {sT0}, {sT0}, {sP}')
    e(f's_lshl_b32 {sT0}, {sT0}, 10\ns_add_u32 {sT0}, {sT0}, {WS_O(l)}\ns_add_u32 {sT1}, {sT0}, 16384')
    OP = 96
    for n, (t, h) in enumerate(combos):
        e(f'v_rcp_f32 v{SMA+4*n}, v{SMA+4*n}')
        for r in range(4): e(f'v_mul_f32 v{OA+4*n+r}, v{OA+4*n+r}, v{SMA+4*n}')
        d = OP + t*4 + h*2
        e(f'v_cvt_pk_bf16_f32 v{d}, v{OA+4*n}, v{OA+4*n+1}\nv_cvt_pk_bf16_f32 v{d+1}, v{OA+4*n+2}, v{OA+4*n+3}')
        if h == 1:
            e(f'buffer_store_dwordx4 {v(OP + t*4, 4)}, {vL16}, {srd(WS)}, {(sT0, sT1)[t]} offen sc1', 'ost')
    e.auto = 0
    stamp()
    publish(WS_FLAG(l, 0), f's_lshl_b32 {sT0}, {sTB}, 4\ns_add_u32 {sT0}, {sT0}, {sP}')
    rest = e.side; e.side = []
    for p in range(9, 12): q_dma('wo', p, wo_slot(p))
    e.side += rest

def big_addr(with_kh):
    e(f'v_lshrrev_b32 {vT0}, 2, {vL}')
    e(f'v_lshrrev_b32 {vT1}, 3, {vL}\nv_and_b32 {vT1}, 3, {vT1}')
    e(f'v_lshlrev_b32 {vT0}, 7, {vT0}\nv_lshl_add_u32 {vT0}, {vT1}, 5, {vT0}')
    e(f'v_and_b32 {vT1}, 3, {vL}\nv_lshl_add_u32 {vT0}, {vT1}, 3, {vT0}')
    if with_kh:
        e(f's_lshl_b32 {sT0}, {sKH}, 6\nv_xor_b32 {vT0}, {sT0}, {vT0}\ns_lshl_b32 {sT0}, {sKH}, 12\nv_add_u32 {vT0}, {sT0}, {vT0}')
    for sg in range(4):
        e(f'v_xor_b32 v{vA[sg]}, {32*sg}, {vT0}')
        e(f'v_add_u32 v{vA[4+sg]}, {12*SLOT}, v{vA[sg]}\nv_add_u32 v{vA[8+sg]}, {24*SLOT}, v{vA[sg]}')

def big_tr(dst, slot, sg, h):
    st = slot // 12
    return f'ds_read_b64_tr_b16 {dst}, v{vA[st*4+sg]} offset:{(slot - st*12)*SLOT + h*2048}'

RS = 128
def phase2(l):
    st0 = 18 + (0 if l == 0 else P('p1stage', 7))
    q_stage('w1', st0, max(st0, 18 + P('wa_stage', 7)))
    e.drain()
    q_stage('w1', max(st0, 18 + P('wa_stage', 7)))
    big_addr(False)
    poll(WS_FLAG(l, 0), f's_lshr_b32 {sT0}, {sSB}, 1\ns_lshl_b32 {sT0}, {sT0}, 4', 16)
    stamp()
    OF = 128
    e(f's_lshl_b32 {sT0}, {sSB}, 2\ns_add_u32 {sT0}, {sT0}, {sW}\ns_lshl_b32 {sT0}, {sT0}, 14\ns_add_u32 {sT0}, {sT0}, {WS_O(l)}')
    def oload(p):
        if p and p % 4 == 0: e(f's_add_u32 {sT0}, {sT0}, 4096')
        e(f'buffer_load_dwordx4 {v(OF + 4*p, 4)}, {vL16}, {srd(WS)}, {sT0} offen offset:{(p % 4)*1024} sc1', ('o', p))
    lead = P('p2lead', 12)
    for p in range(lead): oload(p)
    NB, DW = 12, P('p2dw', 7)
    def reads(ph):
        p, ct = divmod(ph, 4)
        return [big_tr(a((ph % NB)*4 + 2*h, 2), wo_slot(p), ct, h) for h in (0, 1)]
    for ph in range(DW):
        for r in reads(ph): e(r, ('f2', ph))
    AC = 64
    for p in range(16):
        for ct in range(4):
            ph = 4*p + ct
            e.wait_both(('o', p) if ct == 0 else None, ('f2', ph))
            ac = v(AC + 4*ct, 4)
            e(f'v_mfma_f32_16x16x32_bf16 {ac}, {a((ph % NB)*4, 4)}, {v(OF + 4*p, 4)}, {"0" if p == 0 else ac}')
            if ph + DW < 64:
                for r in reads(ph + DW): e(r, ('f2', ph + DW))
            if ct == 0 and p + lead < 16: oload(p + lead)
    stamp()
    T = 80
    for ct in range(4):
        e(f'v_lshlrev_b32 v{T+4*ct}, 16, v{CARRY+2*ct}\nv_and_b32 v{T+4*ct+1}, 0xffff0000, v{CARRY+2*ct}')
        e(f'v_lshlrev_b32 v{T+4*ct+2}, 16, v{CARRY+2*ct+1}\nv_and_b32 v{T+4*ct+3}, 0xffff0000, v{CARRY+2*ct+1}')
    for i in range(16): e(f'v_add_f32 v{AC+i}, v{AC+i}, v{T+i}')
    S_, Q_ = 96, 98
    e(f'v_add_f32 v{S_}, v{AC}, v{AC+1}\nv_mul_f32 v{Q_}, v{AC}, v{AC}\nv_add_f32 v{S_+1}, v{AC+2}, v{AC+3}\nv_mul_f32 v{Q_+1}, v{AC+1}, v{AC+1}')
    for i in range(2, 16):
        e(f'v_fmac_f32 v{Q_ + (i & 1)}, v{AC+i}, v{AC+i}')
        if i >= 4: e(f'v_add_f32 v{S_ + (i & 1)}, v{S_ + (i & 1)}, v{AC+i}')
    e(f'v_add_f32 v{S_}, v{S_}, v{S_+1}\nv_add_f32 v{Q_}, v{Q_}, v{Q_+1}')
    e(f's_lshl_b32 {sT0}, {sSB}, 2\ns_add_u32 {sT0}, {sT0}, {sW}\ns_lshl_b32 {sT0}, {sT0}, 11\ns_add_u32 {sT0}, {sT0}, {WS_STAT(l)}')
    e(f'v_permlane32_swap_b32 v{S_}, v{Q_}\nv_add_f32 v{S_}, v{S_}, v{Q_}\nv_mov_b32 v{Q_}, v{S_}')
    e(f's_lshl_b32 {sT1}, {sDT}, 8\ns_add_u32 {sT1}, {sT1}, {sT0}')
    e(f'v_lshrrev_b32 {vT0}, 1, {vG}\nv_lshlrev_b32 {vT0}, 3, {vT0}\nv_lshl_add_u32 {vT0}, {vJ}, 4, {vT0}')
    e(f'v_permlane16_swap_b32 v{S_}, v{Q_}\nv_add_f32 v{S_}, v{S_}, v{Q_}\nv_mov_b32 v{S_+1}, {vTAG}')
    e(f'buffer_store_dwordx2 {v(S_, 2)}, {vT0}, {srd(WS)}, {sT1} offen sc1', 'gran')
    XP = 100
    e(f's_lshl_b32 {sT1}, {sW}, 11\ns_add_u32 {sT1}, {sT1}, {SC}\nv_lshlrev_b32 {vT1}, 7, {vJ}\nv_lshl_add_u32 {vT1}, {vG}, 3, {vT1}\nv_add_u32 {vT1}, {sT1}, {vT1}')
    for ct in range(4):
        e(f'v_cvt_pk_bf16_f32 v{XP+2*ct}, v{AC+4*ct}, v{AC+4*ct+1}\nv_cvt_pk_bf16_f32 v{XP+2*ct+1}, v{AC+4*ct+2}, v{AC+4*ct+3}')
        e(f'ds_write_b64 {vT1}, {v(XP+2*ct, 2)} offset:{8192 + 32*ct}', 'x1w')
    e.drain(P('ws_drain', 4))
    e(f'v_lshrrev_b32 {vT0}, 2, {vL}\nv_lshlrev_b32 {vT0}, 7, {vT0}\nv_and_b32 {vT2}, 3, {vL}\nv_lshl_add_u32 {vT0}, {vT2}, 4, {vT0}')
    e(f's_lshl_b32 {sT2}, {sKH}, 6\ns_lshl_b32 {sT1}, {sMH}, 3\ns_add_u32 {sT2}, {sT2}, {sT1}\ns_add_u32 {sT2}, {sT2}, {SC}\nv_add_u32 {vT0}, {sT2}, {vT0}')
    e(f's_lshl_b32 {sT2}, {sKH}, 12\ns_lshl_b32 {sT1}, {sMH}, 6\ns_add_u32 {sT2}, {sT2}, {sT1}\ns_add_u32 {sT2}, {sT2}, {SC + 8192}')
    e(f'v_lshlrev_b32 {vT2}, 7, {vJ}\nv_lshl_add_u32 {vT2}, {vG}, 4, {vT2}\nv_add_u32 {vT2}, {sT2}, {vT2}')
    e(f's_lshl_b32 {sT2}, {sDT}, 2\ns_add_u32 {sT2}, {sT2}, {sW}\ns_lshl_b32 {sT2}, {sT2}, 16\ns_lshl_b32 {sT1}, {sSB}, 11\ns_add_u32 {sT2}, {sT2}, {sT1}\ns_add_u32 {sT2}, {sT2}, {WS_H2(l)}')
    G0 = 108
    L = e.label('stat'); Ld = L + '_d'
    e(f's_mov_b32 {sCNT}, 30000')
    e(f'{L}:')
    e(f'buffer_load_dwordx4 {v(G0, 4)}, {vL16}, {srd(WS)}, {sT0} offen sc1', 'gp')
    e(f'buffer_load_dwordx4 {v(G0+4, 4)}, {vL16}, {srd(WS)}, {sT0} offen offset:1024 sc1', 'gp')
    e('s_waitcnt vmcnt(0)')
    e(f'v_xor_b32 v{G0+1}, v{G0+1}, {vTAG}\nv_xor_b32 v{G0+3}, v{G0+3}, {vTAG}\nv_xor_b32 v{G0+5}, v{G0+5}, {vTAG}\nv_xor_b32 v{G0+7}, v{G0+7}, {vTAG}')
    e(f'v_or_b32 v{G0+1}, v{G0+1}, v{G0+3}\nv_or3_b32 v{G0+1}, v{G0+1}, v{G0+5}, v{G0+7}')
    e(f'v_cmp_ne_u32 vcc, 0, v{G0+1}')
    e(f's_cbranch_vccz {Ld}')
    e(f's_sub_u32 {sCNT}, {sCNT}, 1\ns_cmp_lg_u32 {sCNT}, 0\ns_cbranch_scc1 {L}')
    e(f'{Ld}:')
    stamp()
    e(f'v_add_f32 v{S_}, v{G0}, v{G0+4}\nv_add_f32 v{Q_}, v{G0+2}, v{G0+6}')
    for sw in ('v_permlane32_swap_b32', 'v_permlane16_swap_b32'):
        e(f'v_mov_b32 v{S_+1}, v{S_}\nv_mov_b32 v{Q_+1}, v{Q_}')
        e(f'{sw} v{S_}, v{S_+1}\n{sw} v{Q_}, v{Q_+1}')
        e(f'v_add_f32 v{S_}, v{S_}, v{S_+1}\nv_add_f32 v{Q_}, v{Q_}, v{Q_+1}')
    ln_stats(f'v{S_}', f'v{Q_}', f'v{S_+1}', f'v{Q_+1}', G0, double=True)
    for ct in range(4):
        for i in range(4*ct, 4*ct+4): e(f'v_fma_f32 v{AC+i}, v{AC+i}, v{S_+1}, v{Q_+1}')
        e(f'v_cvt_pk_bf16_f32 v{XP+2*ct}, v{AC+4*ct}, v{AC+4*ct+1}\nv_cvt_pk_bf16_f32 v{XP+2*ct+1}, v{AC+4*ct+2}, v{AC+4*ct+3}')
        e(f'ds_write_b64 {vT1}, {v(XP+2*ct, 2)} offset:{32*ct}', 'h2w')
    e('s_waitcnt lgkmcnt(0)\ns_barrier')
    HP = 80
    for kp in range(2):
        for h in range(2):
            e(f'ds_read_b64_tr_b16 {v(HP + 4*kp + 2*h, 2)}, {vT0} offset:{(32*kp + 16*h)*RS}', ('h2r', kp))
    for t in range(2): e(f'ds_read_b128 {v(CARRY + 4*t, 4)}, {vT2} offset:{16*t*RS}', 'x1r')
    for kp in range(2):
        e.wait_lg(('h2r', kp))
        e(f'buffer_store_dwordx4 {v(HP + 4*kp, 4)}, {vL16}, {srd(WS)}, {sT2} offen offset:{1024*kp} sc1', 'h2st')
    stamp()
    e('s_waitcnt lgkmcnt(0)')
    publish(WS_FLAG(l, 1), f's_lshl_b32 {sT0}, {sDT}, 5\ns_add_u32 {sT0}, {sT0}, {sSB}')

def big_loop(kind, l, nt, c, act_base_code, mid_cb):
    e(act_base_code)
    def areg(t, T): return 128 + (t % 16) * 8 + 4 * T
    def aload(t, T):
        if T == 0 and t and t % 4 == 0: e(f's_add_u32 {sXA}, {sXA}, 4096\ns_add_u32 {sXB}, {sXB}, 4096')
        e(f'buffer_load_dwordx4 {v(areg(t, T), 4)}, {vL16}, {srd(WS)}, {(sXA, sXB)[T]} offen offset:{(t % 4)*1024} sc1', ('act', t))
    lead = P('lead', 7)
    for t in range(lead):
        for T in (0, 1): aload(t, T)
    FB = 96
    AC = 64
    NB, DW = 8, P('dw', 6)
    def reads(ph):
        t, sg = divmod(ph, 4)
        return [big_tr(v(FB + (ph % NB)*4 + 2*h, 2), big_slot(c, t, 0), sg, h) for h in (0, 1)]
    ns = nt - 18
    hs = ns // 2
    b1, b2 = hs, 2 * hs
    ahead = (DW + 3) // 4
    b3 = min(18 + hs - ahead, nt - lead)
    assert b2 + hs <= b3 <= 18 + hs - ahead and b2 <= 18 - ahead
    e(f'v_add_u32 {vT3}, {sM0}, {vL16}')
    e(f'v_add_u32 {vT2}, {12*SLOT}, {vT3}\nv_add_u32 {vT1}, {24*SLOT}, {vT3}')
    wa = (vT3, vT2, vT1)
    for ph in range(DW):
        for r in reads(ph): e(r, (kind + 'f', ph))
    for t in range(nt):
        if t in (b1, b2, b3):
            if t != b1 and 'nostw' not in EXP: e.wait_lg('stw')
            e('s_barrier')
            if t == b3: mid_cb(t)
        wr = []
        if b1 <= t < b2 + hs and 'nostw' not in EXP:
            ts = 18 + (t - b1)
            for kh in (0, 1):
                slot = big_slot(c, ts, kh)
                st = slot // 12
                wr.append(f'ds_write_b128 {wa[st]}, {a(STG[kind] + ((ts-18)*2 + kh)*4, 4)} offset:{(slot - st*12)*SLOT}')
        for sg in range(4):
            ph = 4*t + sg
            e.wait_both(('act', t) if sg == 0 and 'noactwait' not in EXP else None, (kind + 'f', ph))
            nx = reads(ph + DW) if ph + DW < 4*nt else []
            for T in (0, 1):
                ac = v(AC + (sg*2 + T)*4, 4)
                W_, X_ = v(FB + (ph % NB)*4, 4), v(areg(t, T), 4)
                A, B = (W_, X_) if kind == 'w1' else (X_, W_)
                e(f'v_mfma_f32_16x16x32_bf16 {ac}, {A}, {B}, {"0" if t == 0 else ac}')
                if nx: e(nx[T], (kind + 'f', ph + DW))
                if T == 1:
                    if sg in (0, 2):
                        if 'noact' in EXP: pass
                        elif t + lead < nt: aload(t + lead, sg // 2)
                        else: e.drain(1)
                    elif wr: e(wr.pop(0), 'stw')
        assert not wr
    stamp()
    e(f's_lshl_b32 {sT0}, {sW}, 12\ns_add_u32 {sT0}, {sT0}, {SC}\nv_add_u32 {vT0}, {sT0}, {vL16}\nv_xor_b32 {vT1}, 8192, {vT0}')
    assert SC % 16384 == 0
    for i in range(4): e(f'ds_write_b128 {vT0}, {v(AC + 16 + 4*i, 4)} offset:{1024*i}', 'xw')
    e('s_waitcnt lgkmcnt(0)\ns_barrier')
    for i in range(4): e(f'ds_read_b128 {v(96 + 4*i, 4)}, {vT1} offset:{1024*i}', ('xr', i))
    return b3

def phase3(l):
    Lskip, Lend = e.label('p3skip'), e.label('p3end')
    nws = P('wb_stage2', 4)
    e(f's_cmp_ge_u32 {sI}, 28\ns_cbranch_scc1 {Lskip}')
    rest = e.side; e.side = []
    q_big('w1', 10, 18)
    e.side += rest
    q_stage('w2', 18, 18 + nws)
    e.drain()
    big_addr(True)
    e(f's_lshl_b32 {sT0}, {sKH}, 6\ns_add_u32 {sT0}, {sT0}, {sBW1}\nv_lshlrev_b32 {vT0}, 3, {vG}')
    for sg in range(2): e(f'buffer_load_dwordx2 {v(BIAS + 2*sg, 2)}, {vT0}, {srd(B1)}, {sT0} offen offset:{32*sg}', 'b1')
    poll(WS_FLAG(l, 1), f's_lshl_b32 {sT0}, {sDT3}, 5', 32)
    stamp()
    def mid(t):
        q_big('w2', 0, t - 14)
    b3 = big_loop('w1', l, 32, C1,
             f's_lshl_b32 {sXA}, {sDT3}, 1\ns_add_u32 {sXA}, {sXA}, {sMH}\ns_lshl_b32 {sXA}, {sXA}, 17\ns_lshl_b32 {sT1}, {sKH}, 15\n'
             f's_add_u32 {sXA}, {sXA}, {sT1}\ns_add_u32 {sXA}, {sXA}, {WS_H2(l)}\ns_add_u32 {sXB}, {sXA}, 65536', mid)
    q_big('w2', b3 - 14, 18)
    q_stage('w2', 18 + nws)
    AC = 64
    BF = 112
    e.auto = P('auto3', 0)
    for sg in range(2):
        e(f'v_lshlrev_b32 v{BF+4*sg}, 16, v{BIAS+2*sg}\nv_and_b32 v{BF+4*sg+1}, 0xffff0000, v{BIAS+2*sg}')
        e(f'v_lshlrev_b32 v{BF+4*sg+2}, 16, v{BIAS+2*sg+1}\nv_and_b32 v{BF+4*sg+3}, 0xffff0000, v{BIAS+2*sg+1}')
    for i in range(16): e(f'v_add_f32 v{AC+i}, v{AC+i}, v{BF + (i // 8)*4 + (i % 4)}')
    k0 = -2.0 * math.sqrt(2.0 / math.pi) * math.log2(math.e)
    e(f's_mov_b32 {sC1}, {hx(f2u(k0 * 0.044715))}\nv_mov_b32 v120, {hx(f2u(k0))}')
    e(f's_lshl_b32 {sT0}, {sDT3}, 1\ns_add_u32 {sT0}, {sT0}, {sMH}\ns_mul_i32 {sT0}, {sT0}, 112\ns_lshl_b32 {sT1}, {sFT}, 1\ns_add_u32 {sT0}, {sT0}, {sT1}\ns_add_u32 {sT0}, {sT0}, {sKH}')
    e(f's_lshl_b32 {sT0}, {sT0}, 10\ns_add_u32 {sT0}, {sT0}, {WS_U(l)}\ns_add_u32 {sT1}, {sT0}, {56*1024}')
    TT = 80
    for i in range(4):
        e.wait_lg(('xr', i))
        for r in range(4): e(f'v_add_f32 v{AC+4*i+r}, v{AC+4*i+r}, v{96+4*i+r}')
    e.auto = 0
    UP = 96
    for T in (0, 1):
        idx = [(sg*2 + T)*4 + r for sg in (0, 1) for r in range(4)]
        for i in idx: e(f'v_mul_f32 v{TT+i}, v{AC+i}, v{AC+i}')
        for i in idx: e(f'v_fma_f32 v{TT+i}, v{TT+i}, {sC1}, v120')
        for i in idx: e(f'v_mul_f32 v{TT+i}, v{TT+i}, v{AC+i}')
        for i in idx: e(f'v_exp_f32 v{TT+i}, v{TT+i}')
        for i in idx: e(f'v_add_f32 v{TT+i}, 1.0, v{TT+i}')
        for i in idx: e(f'v_rcp_f32 v{TT+i}, v{TT+i}')
        for i in idx: e(f'v_mul_f32 v{AC+i}, v{AC+i}, v{TT+i}')
        for sg in (0, 1):
            s_ = AC + (sg*2 + T)*4
            e(f'v_cvt_pk_bf16_f32 v{UP+4*T+2*sg}, v{s_}, v{s_+1}\nv_cvt_pk_bf16_f32 v{UP+4*T+2*sg+1}, v{s_+2}, v{s_+3}')
        e(f'buffer_store_dwordx4 {v(UP+4*T, 4)}, {vL16}, {srd(WS)}, {(sT0, sT1)[T]} offen sc1', 'ust')
    stamp()
    publish(WS_FLAG(l, 2), f's_lshl_b32 {sT0}, {sDT3}, 5\ns_add_u32 {sT0}, {sT0}, {sFT}')
    e.drain()
    e(f's_branch {Lend}')
    e(f'{Lskip}:')
    big_addr(True)
    q_big('w2', 0, 18)
    q_stage('w2')
    e.drain()
    e(f'{Lend}:')

def phase4(l):
    last = l == 1
    e(f's_lshl_b32 {sT0}, {sKH}, 6\ns_add_u32 {sT0}, {sT0}, {sBW2}\nv_lshlrev_b32 {vT0}, 1, {vJ}')
    for sg in range(2): e(f'buffer_load_ushort v{BIAS + sg}, {vT0}, {srd(B2)}, {sT0} offen offset:{32*sg}', 'b2')
    poll(WS_FLAG(l, 2), f's_lshl_b32 {sT0}, {sDT}, 5', 28)
    stamp()
    freed = []
    def q_next(sl):
        if sl < 24: q_dma('qkv', sl, sl)
        elif sl < 33: q_dma('wo', sl - 24, sl)
    def mid(t):
        if last: return
        for tt in range(10, t):
            for kh in (0, 1): freed.append(big_slot(C2, tt, kh))
        for sl in sorted(freed): q_next(sl)
    big_loop('w2', l, 28, C2,
             f's_lshl_b32 {sXA}, {sDT}, 1\ns_add_u32 {sXA}, {sXA}, {sMH}\ns_mul_i32 {sXA}, {sXA}, {112*1024}\ns_mul_i32 {sT1}, {sKH}, {28*1024}\n'
             f's_add_u32 {sXA}, {sXA}, {sT1}\ns_add_u32 {sXA}, {sXA}, {WS_U(l)}\ns_add_u32 {sXB}, {sXA}, {56*1024}', mid)
    AC = 64
    RX = 112
    for sg in range(2):
        e(f'v_lshlrev_b32 v{BIAS+sg}, 16, v{BIAS+sg}')
        for i in range(4):
            e(f'v_lshlrev_b32 v{RX+8*sg+2*i}, 16, v{CARRY+4*sg+i}\nv_and_b32 v{RX+8*sg+2*i+1}, 0xffff0000, v{CARRY+4*sg+i}')
    for i in range(16): e(f'v_add_f32 v{RX+i}, v{RX+i}, v{BIAS + i // 8}')
    for i in range(16): e(f'v_add_f32 v{AC+i}, v{AC+i}, v{RX+i}')
    e(f's_lshl_b32 {sT0}, {sSB}, 1\ns_add_u32 {sT0}, {sT0}, {sKH}\ns_lshl_b32 {sT0}, {sT0}, 15')
    if last:
        e(f's_add_u32 {sT0}, {sT0}, {sBWO}\ns_lshl_b32 {sT1}, {sMH}, 6\ns_add_u32 {sT0}, {sT0}, {sT1}')
        e(f'v_lshlrev_b32 {vT2}, 10, {vJ}\nv_lshl_add_u32 {vT2}, {vG}, 4, {vT2}')
    else:
        e(f's_lshl_b32 {sT1}, {sDT}, 1\ns_add_u32 {sT1}, {sT1}, {sMH}\ns_lshl_b32 {sT1}, {sT1}, 10\ns_add_u32 {sT0}, {sT0}, {sT1}\ns_add_u32 {sT0}, {sT0}, {WS_X2}')
    e(f's_add_u32 {sT1}, {sT0}, 16384')
    XP = 80
    for sg in range(2):
        for i in (2*sg, 2*sg+1):
            e.wait_lg(('xr', i))
            for r in range(4): e(f'v_add_f32 v{AC+4*i+r}, v{AC+4*i+r}, v{96+4*i+r}')
        for i in range(4): e(f'v_cvt_pk_bf16_f32 v{XP+4*sg+i}, v{AC+8*sg+2*i}, v{AC+8*sg+2*i+1}')
        if last: e(f'buffer_store_dwordx4 {v(XP+4*sg, 4)}, {vT2}, {srd(OUTS)}, {(sT0, sT1)[sg]} offen', 'xst')
        else: e(f'buffer_store_dwordx4 {v(XP+4*sg, 4)}, {vL16}, {srd(WS)}, {(sT0, sT1)[sg]} offen sc1', 'xst')
    stamp()
    if last: return
    publish(WS_FLAG(l, 3), f's_lshl_b32 {sT0}, {sSB}, 3\ns_add_u32 {sT0}, {sT0}, {sDT}')
    e(f's_lshl_b32 {sT0}, {sKH}, 12\ns_lshl_b32 {sT1}, {sMH}, 6\ns_add_u32 {sT0}, {sT0}, {sT1}\ns_add_u32 {sT0}, {sT0}, {SC}')
    e(f'v_lshlrev_b32 {vT2}, 7, {vJ}\nv_lshl_add_u32 {vT2}, {vG}, 4, {vT2}\nv_add_u32 {vT2}, {sT0}, {vT2}')
    for sg in range(2): e(f'ds_write_b128 {vT2}, {v(XP+4*sg, 4)} offset:{16*sg*RS}', 'x2w')
    rest = e.side; e.side = []
    for sl in range(NSLOT):
        if sl not in freed: q_next(sl)
    e.side += rest
    e(f's_lshl_b32 {sT1}, {sW}, 11\ns_add_u32 {sT1}, {sT1}, {SC}\nv_lshlrev_b32 {vT1}, 7, {vJ}\nv_lshl_add_u32 {vT1}, {vG}, 3, {vT1}\nv_add_u32 {vT1}, {sT1}, {vT1}')
    e('s_waitcnt lgkmcnt(0)\ns_barrier')
    for ct in range(4): e(f'ds_read_b64 {v(CARRY+2*ct, 2)}, {vT1} offset:{32*ct}', 'x2r')
    e.drain(8)
    e('s_waitcnt lgkmcnt(0)\ns_barrier')

def epilogue():
    L = e.label('ep')
    e(f's_or_b32 {sT0}, s2, {sW}\ns_cmp_lg_u32 {sT0}, 0\ns_cbranch_scc1 {L}')
    e(f'v_mov_b32 {vT0}, 0\ns_mov_b64 exec, 1')
    e(f'buffer_store_dword {vTAG}, {vT0}, {srd(WS)}, 0 offen sc1')
    e('s_mov_b64 exec, -1')
    e(f'{L}:')
    if STAMPS:
        stamp(); cstamp(63)
        e(f's_lshl_b32 {sT0}, s2, 2\ns_add_u32 {sT0}, {sT0}, {sW}\ns_lshl_b32 {sT0}, {sT0}, 8\ns_add_u32 {sT0}, {sT0}, {WS_DBG}')
        e(f'v_lshlrev_b32 {vT0}, 2, {vL}')
        e(f'buffer_store_dword {vSTAMP}, {vT0}, {srd(WS)}, {sT0} offen')
    e('s_endpgm')
    e.raw('L_end:')

prologue()
for l in range(2):
    phase1(l); phase2(l); phase3(l); phase4(l)
assert not e.side
epilogue()

hdr = open('interleave_layers__sliding_local_dilated__mixer_token_mlp__prompt.s.ref').read().split('; Override')[0]
desc = f""".section .rodata,"a"
.p2align 6
.amdhsa_kernel {NAME}
  .amdhsa_next_free_vgpr 512
  .amdhsa_next_free_sgpr 102
  .amdhsa_accum_offset 256
  .amdhsa_group_segment_fixed_size 0
  .amdhsa_kernarg_size 88
  .amdhsa_user_sgpr_count 2
  .amdhsa_user_sgpr_kernarg_segment_ptr 1
  .amdhsa_system_sgpr_workgroup_id_x 1
.end_amdhsa_kernel
"""
open(OUT, 'w').write(hdr + f'; @launch grid=(256,1,1) block=(256,1,1) lds={LDS_BYTES}\n.amdgcn_target "amdgcn-amd-amdhsa--gfx950"\n.text\n' + e.text() + desc)
print('instructions', e.ninstr, 'stamps', nstamp[0])
```

```python
import sys, struct, math
sys.path.insert(0, 'gen')
from emit import Emitter

NAME = 'interleave_layers__sliding_local_dilated__mixer_token_mlp__prompt_kernel'
OUT = [a for a in sys.argv[1:] if not a.startswith('--')][0]
EXP = {}
for a_ in sys.argv[1:]:
    if a_.startswith('--'):
        k_, _, v_ = a_[2:].partition('=')
        EXP[k_] = int(v_) if v_ else 1
STAMPS = 'stamps' in EXP
def P(name, default): return EXP.get(name, default)

def f2u(x): return struct.unpack('<I', struct.pack('<f', x))[0]
def hx(x): return '0x%08x' % (x & 0xffffffff)

WS_FLAG = lambda l, ph: 0x10000 * (1 + l * 4 + ph)
WS_STAT = lambda l: 0x100000 + l * 0x40000
WS_O = lambda l: 0x200000 + l * 0x200000
WS_H2 = lambda l: 0x600000 + l * 0x200000
WS_U = lambda l: 0xA00000 + l * 0x200000
WS_X2 = 0xE00000
WS_XH = 0x1000000
WS_FH = 0x90000
WS_FS = lambda l: 0xB0000 + l * 0x8000
WS_PS = 0x180000
WS_XCC = 0xA0000
WS_DBG = 0x2000000
FSTR = 128

SLOT = 4096
NSLOT = 36
SC = NSLOT * SLOT
LDS_BYTES = SC + 16384
assert LDS_BYTES == 163840
HALO = SC
XS = 24 * SLOT
P1S = 32 * SLOT
VT = P1S
KX = P1S + 9216
CSX = P1S + 9216 + 5120
NWE = 8

X0, WQKV, WO, W1, W2, B1, B2, OUTS, WS = 4, 8, 12, 16, 20, 24, 28, 32, 36
def srd(n): return f's[{n}:{n+3}]'
sTAG, sW, sX, sI, sM0 = 's40', 's41', 's42', 's43', 's44'
sTB, sP, sSB, sDT, sDT3, sFT, sKH, sMH = 's45', 's46', 's47', 's48', 's49', 's50', 's51', 's52'
sBQKV, sBWO, sBW1, sBW2 = 's53', 's54', 's55', 's56'
sROT = 's57'
sT0, sT1, sT2, sT3, sT4 = 's60', 's61', 's62', 's63', 's3'
sPAR, sCUR0, sCUR1 = 's[64:65]', 's[66:67]', 's[68:69]'
sWT, sOB, sFSB = 's76', 's77', 's78'
sCNT = 's70'
sC1 = 's71'
sXA, sXB, sXH, sFAST = 's72', 's73', 's74', 's75'
sXM = 's80'
sKQ = [f's{84+i}' for i in range(8)]
sKX = [f's{92+i}' for i in range(8)]

vL, vG, vJ, vL16, vXR = 'v1', 'v2', 'v3', 'v4', 'v5'
vDQ, vDO, vD1, vD2 = 'v6', 'v7', 'v8', 'v9'
vA = list(range(10, 22))
vT0, vT1, vT2, vT3 = 'v22', 'v23', 'v24', 'v25'
vTAG = 'v26'
vL8 = 'v27'
ONES = 28
CARRY = 32
SELP0, SELP1, SELC0, SELC1 = 'v40', 'v41', 'v42', 'v43'
NEG = 44
BIAS = 48
XB = 136
CS = 232
vB = list(range(56, 62))
vP0, vP1 = 'v62', 'v63'
vSTAMP = 'v0'

e = Emitter()
def v(n, w=1): return f'v{n}' if w == 1 else f'v[{n}:{n+w-1}]'
def a(n, w=1): return f'a{n}' if w == 1 else f'a[{n}:{n+w-1}]'

nstamp = [0]
def stamp():
    if not STAMPS: return
    au = e.auto; e.auto = 0
    e(f's_memrealtime s[58:59]\ns_waitcnt lgkmcnt(0)\nv_writelane_b32 {vSTAMP}, s58, {nstamp[0]}')
    e.auto = au
    nstamp[0] += 1
def cstamp(idx):
    if not STAMPS: return
    e(f's_memtime s[58:59]\ns_waitcnt lgkmcnt(0)\nv_writelane_b32 {vSTAMP}, s58, {idx}')

def dma(kind, idx, slot, tag):
    if kind == 'qkv':
        kk, seg = divmod(idx, 3)
        off, base, vo, s = seg * 1024, sKQ[kk], vDQ, WQKV
    elif kind == 'wo':
        off, base, vo, s = idx * 32 * 1024, sBWO, vDO, WO
    elif kind == 'w1':
        off, base, vo, s = idx * 32 * 3584, sBW1, vD1, W1
    elif kind == 'w2':
        off, base, vo, s = idx * 32 * 4096, sBW2, vD2, W2
    e(f's_add_u32 m0, {sM0}, {slot * SLOT}')
    e(f's_add_u32 {sT3}, {base}, {off}')
    e(f'buffer_load_dwordx4 {vo}, {srd(s)}, {sT3} offen lds', tag)

def wo_slot(p): return 24 + p if p < 12 else p - 12
NT = {'w1': 32, 'w2': 28}
def pair_of(kind, t):
    if kind == 'w1':
        if t < 18: return (t + 16) % 18
        return 2 + (t - 18)
    return t if t < 18 else 8 + (t - 18)
def areg_of(kind, t):
    if kind == 'w1': return (48 + 16 * (t - 18)) % 256
    return 16 * (t - 18)

def q_dma(kind, idx, slot): e.side.append(lambda: dma(kind, idx, slot, 'pf'))
def q_big(kind, t0, t1):
    for t in range(t0, t1):
        for kh in (0, 1): q_dma(kind, kh * NT[kind] + t, pair_of(kind, t) * 2 + kh)

def big_tr(dst, pair, u, sg, h):
    st = pair // 6
    return f'ds_read_b64_tr_b16 {dst}, v{vB[st*2+sg]} offset:{(pair - st*6)*2*SLOT + u*2048 + h*1024}'
def preread(kind, t0, t1):
    for t in range(t0, t1):
        for u in (0, 1):
            for sg in (0, 1):
                for h in (0, 1):
                    e(big_tr(a(areg_of(kind, t) + (u*2+sg)*4 + 2*h, 2), pair_of(kind, t), u, sg, h), 'pre')

def hstore(text, tag, local):
    if not local or not P('fast', 1):
        e(text + ' sc1', tag); return
    au = e.auto; e.auto = 0
    Lf, Lj = e.label('hs_f'), e.label('hs_j')
    e(f's_cmp_lg_u32 {sFAST}, 0\ns_cbranch_scc1 {Lf}')
    e(text + ' sc1', tag)
    e(f's_branch {Lj}\n{Lf}:')
    e(text, tag); e.vm.pop()
    e(f'{Lj}:')
    e.auto = au

def put_flag(flag_base, idx_code, local):
    L = e.label('pub')
    e(f's_cmp_lg_u32 {sW}, 0\ns_cbranch_scc1 {L}')
    e(idx_code)
    e(f's_mul_i32 {sT0}, {sT0}, {FSTR}\ns_add_u32 {sT0}, {sT0}, {flag_base}')
    e(f'v_mov_b32 {vP0}, 0\ns_mov_b64 exec, 1')
    hstore(f'buffer_store_dword {vTAG}, {vP0}, {srd(WS)}, {sT0} offen', 'flag', local); e.vm.pop()
    e('s_mov_b64 exec, -1')
    e(f'{L}:')

def publish(flag_base, idx_code, local=False):
    e('s_waitcnt vmcnt(0)\ns_barrier')
    put_flag(flag_base, idx_code, local)

def poll(flag_base, first_code, count):
    L = e.label('poll'); Ld = L + '_d'
    e(f's_cmp_lg_u32 {sW}, 0\ns_cbranch_scc1 {Ld}')
    e(first_code)
    e(f's_mul_i32 {sT0}, {sT0}, {FSTR}\ns_add_u32 {sT0}, {sT0}, {flag_base}')
    e(f'v_min_u32 {vP0}, {count - 1}, {vL}')
    e(f'v_mul_u32_u24 {vP0}, {FSTR}, {vP0}')
    e(f's_mov_b32 {sCNT}, 30000')
    e(f'{L}:')
    e(f'buffer_load_dword {vP1}, {vP0}, {srd(WS)}, {sT0} offen sc1', 'poll')
    e('s_waitcnt vmcnt(0)')
    e(f'v_cmp_ne_u32 vcc, {vP1}, {vTAG}')
    e(f's_cbranch_vccz {Ld}')
    e(f's_sub_u32 {sCNT}, {sCNT}, 1\ns_cmp_lg_u32 {sCNT}, 0\ns_cbranch_scc1 {L}')
    e(f'{Ld}:')
    e('s_waitcnt vmcnt(0) lgkmcnt(0)\ns_barrier')

def prologue():
    e.raw(f'.globl {NAME}\n.p2align 8\n.type {NAME},@function\n{NAME}:')
    e(f's_cmp_lt_u32 s2, 256\ns_cbranch_scc1 L_go\ns_endpgm\nL_go:')
    e('s_load_dwordx16 s[64:79], s[0:1], 0\ns_load_dwordx2 s[80:81], s[0:1], 64\ns_load_dwordx2 s[82:83], s[0:1], 80')
    e(f'v_lshrrev_b32 {vT0}, 6, v0\nv_and_b32 {vL}, 63, v0')
    e(f'v_readfirstlane_b32 {sW}, {vT0}')
    e(f'v_lshrrev_b32 {vG}, 4, {vL}\nv_and_b32 {vJ}, 15, {vL}\nv_lshlrev_b32 {vL16}, 4, {vL}\nv_lshlrev_b32 {vL8}, 3, {vL}')
    e(f's_and_b32 {sX}, s2, 7\ns_lshr_b32 {sI}, s2, 3\ns_lshl_b32 {sM0}, {sW}, 10')
    e(f's_lshr_b32 {sT0}, {sI}, 4\ns_lshl_b32 {sTB}, {sX}, 1\ns_add_u32 {sTB}, {sTB}, {sT0}\ns_and_b32 {sP}, {sI}, 15')
    e(f's_lshl_b32 {sBQKV}, {sP}, 6')
    e(f's_add_u32 {sROT}, {sP}, {sTB}' if P('rot', 1) else f's_mov_b32 {sROT}, 0')
    for i in range(8):
        e(f's_add_u32 {sKX[i]}, {sROT}, {i}\ns_and_b32 {sKX[i]}, {sKX[i]}, 7\ns_mul_i32 {sKQ[i]}, {sKX[i]}, {64*3072}\ns_add_u32 {sKQ[i]}, {sKQ[i]}, {sBQKV}')
    e(f'v_lshrrev_b32 {vT0}, 2, {vL}\ns_lshl_b32 {sT0}, {sW}, 4\nv_add_u32 {vT0}, {sT0}, {vT0}\nv_mul_u32_u24 {vDQ}, 3072, {vT0}')
    e(f'v_lshrrev_b32 {vT0}, 5, {vL}\nv_lshlrev_b32 {vT0}, 1, {vT0}\nv_and_b32 {vT1}, 3, {vL}\nv_xor_b32 {vT0}, {vT0}, {vT1}\nv_lshl_add_u32 {vDQ}, {vT0}, 4, {vDQ}')
    e(f'v_lshrrev_b32 {vT0}, 3, {vL}\nv_and_b32 {vT1}, 7, {vL}\nv_xor_b32 {vT1}, {vT1}, {vT0}\nv_lshlrev_b32 {vT1}, 4, {vT1}\nv_lshl_add_u32 {vXR}, {vT0}, 10, {vT1}')
    if STAMPS: e(f'v_mov_b32 {vSTAMP}, 0')
    code_prefetch()
    e('s_waitcnt lgkmcnt(0)')
    e(f's_load_dword {sTAG}, s[82:83], 0')
    for n, src, size in ((X0, 64, 2097152), (WQKV, 66, 1572864), (WO, 68, 524288), (W1, 72, 7340032), (B1, 74, 3584),
                         (W2, 76, 7340032), (B2, 78, 4096), (OUTS, 80, 2097152), (WS, 82, 0x10000000)):
        e(f's_mov_b32 s{n}, s{src}\ns_and_b32 s{n+1}, s{src+1}, 0xffff\ns_mov_b32 s{n+2}, {size}\ns_mov_b32 s{n+3}, 0x20000')

def code_prefetch():
    if not P('cpf', 1): return
    e(f's_getpc_b64 s[58:59]')
    e.raw('L_pc:')
    e(f's_sub_u32 s58, s58, L_pc-{NAME}\ns_subb_u32 s59, s59, 0')
    e(f's_lshl_b32 {sT0}, {sI}, 2\ns_add_u32 {sT0}, {sT0}, {sW}\ns_lshl_b32 {sT0}, {sT0}, 9')
    e(f'v_lshlrev_b32 {vT0}, 7, {vL}\nv_add_u32 {vT0}, {sT0}, {vT0}\nv_min_u32 {vT0}, L_end-{NAME}-4, {vT0}')
    e(f's_mov_b64 exec, 15\nglobal_load_dword a253, {vT0}, s[58:59]\ns_mov_b64 exec, -1', 'pf')

def late_setup():
    e(f's_lshr_b32 {sT0}, {sI}, 3\ns_lshl_b32 {sSB}, {sX}, 2\ns_add_u32 {sSB}, {sSB}, {sT0}\ns_and_b32 {sDT}, {sI}, 7')
    e(f's_and_b32 {sT0}, {sX}, 1\ns_lshl_b32 {sT0}, {sT0}, 2\ns_and_b32 {sDT3}, {sI}, 3\ns_add_u32 {sDT3}, {sDT3}, {sT0}')
    e(f's_lshr_b32 {sT0}, {sX}, 1\ns_mul_i32 {sT0}, {sT0}, 7\ns_lshr_b32 {sFT}, {sI}, 2\ns_add_u32 {sFT}, {sFT}, {sT0}')
    e(f's_min_u32 {sFT}, {sFT}, 27')
    e(f's_lshr_b32 {sKH}, {sW}, 1\ns_and_b32 {sMH}, {sW}, 1')
    e(f's_lshl_b32 {sBWO}, {sDT}, 7\ns_lshl_b32 {sBW1}, {sFT}, 7\ns_lshl_b32 {sBW2}, {sSB}, 7')
    e(f'v_lshrrev_b32 {vT0}, 3, {vL}\ns_lshl_b32 {sT0}, {sW}, 3\nv_add_u32 {vT0}, {sT0}, {vT0}')
    e(f'v_and_b32 {vT1}, 7, {vL}\nv_lshlrev_b32 {vT2}, 1, {vG}\nv_xor_b32 {vT1}, {vT1}, {vT2}\nv_lshlrev_b32 {vT1}, 4, {vT1}')
    e(f'v_lshl_add_u32 {vDO}, {vT0}, 10, {vT1}')
    e(f'v_and_b32 {vT1}, 7, {vL}\nv_and_b32 {vT2}, 1, {vG}\nv_lshlrev_b32 {vT2}, 2, {vT2}\nv_xor_b32 {vT1}, {vT1}, {vT2}\nv_lshlrev_b32 {vT1}, 4, {vT1}')
    e(f'v_lshl_add_u32 {vD2}, {vT0}, 12, {vT1}')
    e(f'v_mul_u32_u24 {vD1}, 3584, {vT0}\nv_add_u32 {vD1}, {vD1}, {vT1}')
    for i in range(4): e(f'v_mov_b32 {v(ONES + i)}, 0x3f803f80')
    e('s_waitcnt lgkmcnt(0)')
    e(f's_mul_i32 {sTAG}, {sTAG}, 1664525\ns_add_u32 {sTAG}, {sTAG}, 1013904223')
    e(f'v_mov_b32 {vTAG}, {sTAG}')
    e(f's_getreg_b32 {sXM}, hwreg(HW_REG_XCC_ID)\ns_and_b32 {sXM}, {sXM}, 15')
    Lx = e.label('xcc')
    au = e.auto; e.auto = 0
    e(f's_cmp_lg_u32 {sW}, 0\ns_cbranch_scc1 {Lx}')
    e(f's_add_u32 {sT0}, {sTAG}, {sXM}\nv_mov_b32 {vT1}, {sT0}\ns_lshl_b32 {sT0}, {sX}, 7\ns_lshl_b32 {sT1}, {sI}, 2\ns_add_u32 {sT0}, {sT0}, {sT1}\ns_add_u32 {sT0}, {sT0}, {WS_XCC}')
    e(f'v_mov_b32 {vT0}, 0\ns_mov_b64 exec, 1')
    e(f'buffer_store_dword {vT1}, {vT0}, {srd(WS)}, {sT0} offen sc1', None); e.vm.pop()
    e(f's_mov_b64 exec, -1\n{Lx}:')
    e.auto = au
    e(f'v_lshrrev_b32 {vT0}, 5, {vL}\nv_lshlrev_b32 {vT0}, 2, {vT0}\nv_lshrrev_b32 {vT1}, 2, {vL}\nv_and_b32 {vT1}, 3, {vT1}\nv_add_u32 {vT0}, {vT0}, {vT1}\nv_lshlrev_b32 {vT0}, 7, {vT0}')
    e(f'v_lshrrev_b32 {vT1}, 1, {vT1}\nv_lshl_add_u32 {vT0}, {vT1}, 6, {vT0}\nv_and_b32 {vT1}, 1, {vG}\nv_lshl_add_u32 {vT0}, {vT1}, 5, {vT0}\nv_and_b32 {vT1}, 3, {vL}\nv_lshl_add_u32 {vT0}, {vT1}, 3, {vT0}')
    e(f's_lshl_b32 {sT0}, {sKH}, 6\nv_xor_b32 {vT0}, {sT0}, {vT0}\ns_lshl_b32 {sT0}, {sKH}, 12\nv_add_u32 v{vB[0]}, {sT0}, {vT0}\nv_xor_b32 v{vB[1]}, 64, v{vB[0]}')
    for st in (1, 2):
        for sg in (0, 1): e(f'v_add_u32 v{vB[st*2+sg]}, {st*12*SLOT}, v{vB[sg]}')
    e(f'v_and_b32 {vT0}, 1, {vJ}\nv_cmp_eq_u32 {sPAR}, 1, {vT0}')
    e(f'v_lshl_add_u32 {vT1}, {vG}, 2, {vT0}')
    e(f'v_cmp_le_u32 {sCUR0}, {vT1}, {vJ}\nv_add_u32 {vT1}, 2, {vT1}\nv_cmp_le_u32 {sCUR1}, {vT1}, {vJ}')
    e(f's_lshl_b32 {sWT}, {sI}, 2\ns_add_u32 {sWT}, {sWT}, {sW}\ns_lshr_b32 {sT0}, {sWT}, 6\ns_and_b32 {sWT}, {sWT}, 63\ns_mul_i32 {sWT}, {sWT}, {(16 // P("ntouch", 8))*3584}')
    e(f's_mul_i32 {sT0}, {sT0}, {1024*3584}\ns_add_u32 {sWT}, {sWT}, {sT0}\ns_lshr_b32 {sT0}, {sX}, 1\ns_mul_i32 {sT0}, {sT0}, 896\ns_add_u32 {sWT}, {sWT}, {sT0}')
    e(f's_lshl_b32 {sOB}, {sTB}, 3\ns_lshl_b32 {sT0}, {sW}, 1\ns_add_u32 {sOB}, {sOB}, {sT0}\ns_lshl_b32 {sOB}, {sOB}, 4\ns_add_u32 {sOB}, {sOB}, {sP}\ns_lshl_b32 {sOB}, {sOB}, 10')
    e(f'v_mov_b32 {vT2}, 0x0c0c0c0c')
    for u, (sc, sp, cur) in enumerate(((SELC0, SELP0, sCUR0), (SELC1, SELP1, sCUR1))):
        lo = 0x0c0c0000 | ((2*u+1) << 8) | (2*u)
        hi = ((2*u+1) << 24) | ((2*u) << 16) | 0x0c0c
        e(f'v_mov_b32 {vT0}, {hx(lo)}\nv_mov_b32 {vT1}, {hx(hi)}\nv_cndmask_b32 {vT0}, {vT0}, {vT1}, {sPAR}')
        e(f'v_cndmask_b32 {sc}, {vT2}, {vT0}, {cur}\nv_cndmask_b32 {sp}, {vT0}, {vT2}, {cur}')
    e(f's_or_b32 {sT0}, {sTB}, {sW}\ns_cmp_eq_u32 {sT0}, 0\ns_cselect_b32 {sT0}, {hx(f2u(-1e30))}, 0')
    for i in range(4): e(f'v_mov_b32 {v(NEG + i)}, {sT0}')

XF = 136
ACC1 = 64
def acc1(t, c): return ACC1 + (t * 6 + c) * 4
HA, HB = 112, 116
FSR = 120
PSR = 132

def p1_tr(dst, kt, seg, h, avs):
    slot = (kt >> 1) * 3 + seg
    st = slot // 12
    imm = (slot - st * 12) * SLOT + (kt & 1) * 2048 + h * 256
    return f'ds_read_b64_tr_b16 {dst}, v{avs[st]} offset:{imm}'

def ln_stats(vs, vq, vr, vn, t0, double=False):
    e(f'v_mul_f32 {vs}, {hx(f2u(1/512))}, {vs}')
    e(f'v_mul_f32 {vq}, {hx(f2u(1/512))}, {vq}')
    e(f'v_fma_f32 {vq}, -{vs}, {vs}, {vq}')
    e(f'v_max_f32 {vq}, 0, {vq}')
    e(f'v_add_f32 v{t0}, {hx(f2u(1e-5))}, {vq}')
    e(f'v_rsq_f32 {vr}, v{t0}')
    if double:
        e(f'v_mul_f32 v{t0}, {vr}, {vr}')
        e(f'v_mul_f32 v{t0}, v{t0}, {vq}')
        e(f'v_add_f32 v{t0}, {hx(f2u(1e-5))}, v{t0}')
        e(f'v_rsq_f32 v{t0}, v{t0}')
        e(f'v_mul_f32 {vr}, {vr}, v{t0}')
    e(f'v_mul_f32 {vn}, {vs}, {vr}')
    e(f'v_sub_f32 {vn}, 0, {vn}')

def warm_touch():
    NTCH = P('ntouch', 8)
    rows = 16 // NTCH
    def w1t(q):
        blk = NTCH - 1 - q
        e(f's_add_u32 {sT4}, {sWT}, {blk*(1024//NTCH)*3584}')
        if rows < 8: e(f's_mov_b64 exec, {hx((1 << (8*rows)) - 1) if rows < 4 else "0xffffffff"}' if rows < 4 else 's_mov_b32 exec_hi, 0')
        e(f'buffer_load_dword a250, v{vA[10]}, {srd(W1)}, {sT4} offen', 'pf')
        if rows < 8: e('s_mov_b64 exec, -1')
    return [lambda q=q: w1t(q) for q in range(NTCH)]

def spin_check(tag, loads, bad_code):
    L = e.label('chk'); Ld = L + '_d'
    e.wait_vm(tag)
    e(f's_mov_b32 {sCNT}, 30000')
    e(f'{L}:')
    e(bad_code)
    e(f's_cbranch_vccz {Ld}')
    for ld in loads:
        e(ld, None); e.vm.pop()
    e(f's_waitcnt vmcnt(0)\ns_sub_u32 {sCNT}, {sCNT}, 1\ns_cmp_lg_u32 {sCNT}, 0\ns_cbranch_scc1 {L}')
    e(f'{Ld}:')

def phase1(l):
    first = l == 0
    def addr_setup():
        e(f'v_lshrrev_b32 {vT0}, 2, {vL}\nv_and_b32 {vT0}, 3, {vT0}\nv_lshl_add_u32 {vT0}, {vG}, 3, {vT0}\nv_lshlrev_b32 {vT0}, 6, {vT0}')
        e(f'v_and_b32 {vT1}, 3, {vL}\nv_lshl_add_u32 {vT0}, {vT1}, 3, {vT0}')
        e(f'v_and_b32 {vT1}, 1, {vG}\nv_lshl_add_u32 v{vA[0]}, {vT1}, 5, {vT0}')
        e(f'v_add_u32 v{vA[1]}, {12*SLOT}, v{vA[0]}')
        e(f'v_xor_b32 v{vA[2]}, 32, v{vA[0]}\nv_xor_b32 v{vA[3]}, 32, v{vA[1]}')
        e(f'v_lshrrev_b32 {vT0}, 3, {vL}\nv_mul_u32_u24 {vT2}, 3584, {vT0}\nv_and_b32 {vT1}, 7, {vL}\nv_min_u32 v{vA[10]}, 6, {vT1}\nv_lshl_add_u32 v{vA[10]}, v{vA[10]}, 7, {vT2}')
        e(f'v_lshlrev_b32 {vT0}, 14, {vT0}\nv_lshl_add_u32 v{vA[11]}, {vT1}, 7, {vT0}')
        e(f's_lshl_b32 {sT0}, {sMH}, 5\nv_xor_b32 {vT2}, {sT0}, v{vA[0]}\nv_xor_b32 {vT3}, {sT0}, v{vA[1]}')
        e(f's_lshl_b32 {sT0}, {sKH}, 12\ns_add_u32 {sT0}, {sT0}, {SLOT}\nv_add_u32 v{vA[4]}, {sT0}, {vT2}\nv_add_u32 v{vA[5]}, {sT0}, {vT3}')
        if first:
            e(f'v_and_b32 {vT0}, 7, {vJ}\nv_xor_b32 {vT0}, {vT0}, {vG}\nv_lshlrev_b32 {vT0}, 4, {vT0}\nv_lshl_add_u32 {vT0}, {vJ}, 7, {vT0}')
            e(f'v_add_u32 v{vA[6]}, {sXB}, {vT0}\nv_xor_b32 v{vA[7]}, 64, v{vA[6]}')
            e(f'v_add_u32 v{vA[8]}, {HALO}, {vT0}\nv_xor_b32 v{vA[9]}, 64, v{vA[8]}')
            e(f'v_lshrrev_b32 {vT0}, 3, {vL}\nv_lshlrev_b32 {vT0}, 11, {vT0}\nv_and_b32 {vT1}, 7, {vL}\nv_lshl_add_u32 {vT0}, {vT1}, 4, {vT0}\nv_add_u32 {vT0}, {HALO}, {vT0}')
        else:
            e(f'v_add_u32 v{vA[8]}, {HALO}, {vL16}\nv_add_u32 v{vA[9]}, 1024, v{vA[8]}')
            e(f's_lshl_b32 {sT0}, {sW}, 12\nv_add_u32 {vT3}, {sT0}, v{vA[8]}')
            e(f'v_lshlrev_b32 v{vA[6]}, 4, {vJ}')
            e(f'v_lshlrev_b32 {vT0}, 8, {vL}\nv_add_u32 {vT0}, {HALO}, {vT0}')
        e(f'ds_write_b128 {vT0}, {v(ONES, 4)}', 'ones')
    def bases():
        e(f's_lshl_b32 {sXA}, {sTB}, 3\ns_lshl_b32 {sT1}, {sW}, 1\ns_add_u32 {sXA}, {sXA}, {sT1}\ns_lshl_b32 {sXA}, {sXA}, 14')
        e(f's_lshl_b32 {sFSB}, {sTB}, 4\ns_add_u32 {sFSB}, {sFSB}, {sP}\ns_lshl_b32 {sFSB}, {sFSB}, 3\ns_add_u32 {sFSB}, {sFSB}, {sT1}')
        if first:
            e(f's_lshl_b32 {sXH}, {sTB}, 3\ns_sub_u32 {sXH}, {sXH}, 1\ns_max_i32 {sXH}, {sXH}, 0\ns_lshl_b32 {sXH}, {sXH}, 14')
            e(f's_mul_i32 {sXB}, {sW}, {3*SLOT}\ns_add_u32 {sXB}, {sXB}, {XS}')
        else:
            e(f's_add_u32 {sXA}, {sXA}, {WS_X2}')
            e(f's_lshl_b32 {sXH}, {sTB}, 14\ns_add_u32 {sXH}, {sXH}, {WS_XH}\ns_cmp_eq_u32 {sTB}, 0\ns_cselect_b32 {sXH}, {WS_X2}, {sXH}')
    if not first:
        addr_setup(); bases()
        e.drain()
        e(f's_lshl_b32 {sT4}, {sFSB}, 7\ns_add_u32 {sT4}, {sT4}, {WS_PS}')
        poll(WS_FLAG(0, 3), f's_lshl_b32 {sT0}, {sTB}, 4', 16)
    stamp()
    if first: cstamp(62); bases()

    def fs_store(R, lanes, shift):
        e(f'v_mov_b32 v{R+1}, {vTAG}\nv_mov_b32 v{R+3}, {vTAG}\nv_lshrrev_b32 {vT1}, {shift}, {vL}\nv_lshlrev_b32 {vT1}, 4, {vT1}')
        e(f's_lshl_b32 {sT4}, {sFSB}, 4\ns_add_u32 {sT4}, {sT4}, {WS_FS(l)}')
        e(lanes)
        e(f'buffer_store_dwordx4 {v(R, 4)}, {vT1}, {srd(WS)}, {sT4} offen sc1', 'fst')
        e('s_mov_b64 exec, -1')

    sched = {}
    if first:
        def xdma(kk, i):
            e(f's_lshl_b32 {sT3}, {sKX[kk]}, 7\ns_add_u32 {sT3}, {sT3}, {sXA}')
            if i: e(f's_add_u32 {sT3}, {sT3}, {8192*i}')
            e(f's_add_u32 m0, {sXB}, {(kk % 3)*SLOT + i*1024}')
            e(f'buffer_load_dwordx4 {vXR}, {srd(X0)}, {sT3} offen lds', ('x', kk))
        def frag(t, kt): return XB + (kt & 1) * 8 + 4 * t
        def halo_dma(n):
            kkl, i = n >> 1, n & 1
            e(f's_lshl_b32 {sT4}, {sW}, 1\ns_add_u32 {sT4}, {sT4}, {sROT}\ns_add_u32 {sT4}, {sT4}, {kkl}\ns_and_b32 {sT4}, {sT4}, 7\ns_lshl_b32 {sT4}, {sT4}, 7')
            e(f's_add_u32 {sT4}, {sT4}, {sXH}\ns_add_u32 {sT4}, {sT4}, {8192*i}')
            e(f's_lshl_b32 {sT3}, {sW}, 12\ns_add_u32 m0, {sT3}, {HALO + kkl*2048 + i*1024}')
            if i == 0: e('s_mov_b32 exec_lo, 0xffffff00')
            e(f'buffer_load_dwordx4 {vXR}, {srd(X0)}, {sT4} offen lds', 'halo')
            if i == 0: e('s_mov_b32 exec_lo, -1')
        RW = 160
        e(f's_lshl_b32 {sT4}, {sFSB}, 10')
        for i in range(2): e(f'buffer_load_dwordx4 {v(RW + 4*i, 4)}, {vL16}, {srd(X0)}, {sT4} offen offset:{1024*i}', 'rw')
        seq = []
        for kk in range(3):
            seq += [lambda kk=kk, i=i: xdma(kk, i) for i in range(4)]
            seq += [lambda kk=kk, seg=seg: dma('qkv', kk*3+seg, kk*3+seg, ('qkv', kk)) for seg in range(3)]
        wq = [lambda kk=kk, seg=seg: dma('qkv', kk*3+seg, kk*3+seg, ('qkv', kk)) for kk in range(3, 8) for seg in range(3)]
        seq += wq[:6] + [lambda n=n: halo_dma(n) for n in range(4)] + wq[6:]
        n0, n1 = P('b0', 9), P('b1', 21)
        for f in seq[:n0]: f()
        e.side = seq[n0:n1]
        e.auto = P('auto0', 12)
        late_setup()
        addr_setup()
        e.wait_vm('rw')
        A_ = 168
        for r in range(4):
            for i in range(2):
                x = f'v{RW + 4*i + r}'
                e(f'v_dot2_f32_bf16 v{A_+i}, {x}, {v(ONES)}, {"0" if r == 0 else f"v{A_+i}"}')
                e(f'v_dot2_f32_bf16 v{A_+2+i}, {x}, {x}, {"0" if r == 0 else f"v{A_+2+i}"}')
        e(f'v_permlane32_swap_b32 v{A_}, v{A_+1}\nv_permlane32_swap_b32 v{A_+2}, v{A_+3}')
        e(f'v_add_f32 v{A_}, v{A_}, v{A_+1}\nv_add_f32 v{A_+2}, v{A_+2}, v{A_+3}')
        e(f'v_permlane16_swap_b32 v{A_}, v{A_+2}\nv_add_f32 v{A_}, v{A_}, v{A_+2}')
        for sh in (8, 4, 2, 1): e(f'v_add_f32_dpp v{A_}, v{A_}, v{A_} row_ror:{sh} row_mask:0xf bank_mask:0xf')
        e(f'v_mov_b32 v{A_+1}, v{A_}\nv_permlane16_swap_b32 v{A_}, v{A_+1}')
        ln_stats(f'v{A_}', f'v{A_+1}', f'v{A_+4}', f'v{A_+6}', A_+2)
        e.auto = 0
        fs_store(A_+4, 's_mov_b32 exec_lo, 1\ns_mov_b32 exec_hi, 1', 5)
        e.drain()
        if 'p1st' in EXP: stamp()
        for kk in range(3, 8):
            sched.setdefault(2*(kk-3)+1, []).extend([lambda kk=kk, i=i: xdma(kk, i) for i in (0, 1)])
            sched.setdefault(2*(kk-3)+2, []).extend([lambda kk=kk, i=i: xdma(kk, i) for i in (2, 3)])
        loads = seq[n1:]
        def res_load(ct):
            if ct == 0:
                e(f's_lshl_b32 {sT2}, {sSB}, 2\ns_add_u32 {sT2}, {sT2}, {sW}\ns_lshl_b32 {sT2}, {sT2}, 14\ns_add_u32 {sT2}, {sT2}, {sBWO}')
                e(f'v_lshlrev_b32 {vT0}, 10, {vJ}\nv_lshl_add_u32 {vT0}, {vG}, 3, {vT0}')
            e(f'buffer_load_dwordx2 {v(CARRY + 2*ct, 2)}, {vT0}, {srd(X0)}, {sT2} offen offset:{ct*32}', 'res')
        xl = f'buffer_load_dword {vP1}, {vP0}, {srd(WS)}, {sT1} offen sc1'
        def xcc_load():
            e(f'v_and_b32 {vP0}, 31, {vL}\nv_lshlrev_b32 {vP0}, 2, {vP0}\ns_lshl_b32 {sT1}, {sX}, 7\ns_add_u32 {sT1}, {sT1}, {WS_XCC}')
            e(xl, 'xcc')
        def xcc_check():
            spin_check('xcc', [xl], f'v_sub_u32 {vT1}, {vP1}, {vTAG}\nv_cmp_lt_u32 vcc, 15, {vT1}')
            e(f'v_cmp_ne_u32 vcc, {sXM}, {vT1}\ns_cmp_eq_u64 vcc, 0\ns_cselect_b32 {sFAST}, 1, 0')
        sched.setdefault(6, []).append(xcc_load)
        sched.setdefault(11, []).append(xcc_check)
        for ct in range(4): sched.setdefault(14 + ct // 2, []).append(lambda ct=ct: res_load(ct))
        ts = P('tstep0', 8)
        per_step = P('ps0', 5)
        hb = P('hb0', 8)
        fsl = P('fsl0', 11)
    else:
        def frag(t, kt): return XF + ((kt % 12) * 2 + t) * 4
        def xload(kt, t):
            if t == 0 and kt % 2 == 0: e(f's_lshl_b32 {sXB}, {sKX[kt >> 1]}, 11\ns_add_u32 {sXB}, {sXB}, {sXA}\ns_add_u32 {sT2}, {sXB}, 16384')
            e(f'buffer_load_dwordx4 {v(frag(t, kt), 4)}, {vL16}, {srd(WS)}, {(sXB, sT2)[t]} offen offset:{(kt & 1)*1024} sc1', ('x', kt))
        hl = f'buffer_load_dword {vP1}, {vP0}, {srd(WS)}, {sT1} offen sc1'
        def hflag_load():
            e(f'v_min_u32 {vP0}, 7, {vL}\nv_mul_u32_u24 {vP0}, {FSTR}, {vP0}')
            e(f's_mul_i32 {sT1}, {sTB}, {8*FSTR}\ns_add_u32 {sT1}, {sT1}, {WS_FH}\ns_cmp_eq_u32 {sTB}, 0\ns_cselect_b32 {sT1}, {WS_FLAG(0, 3)}, {sT1}')
            e(hl, 'hf')
        def halo_load(n):
            if n == 0: spin_check('hf', [hl], f'v_cmp_ne_u32 vcc, {vP1}, {vTAG}')
            if n % 2 == 0:
                e(f's_lshl_b32 {sT4}, {sW}, 1\ns_add_u32 {sT4}, {sT4}, {sROT}\ns_add_u32 {sT4}, {sT4}, {n >> 1}\ns_and_b32 {sT4}, {sT4}, 7\ns_lshl_b32 {sT4}, {sT4}, 11')
                e(f's_add_u32 {sT1}, {sT4}, {sXH}')
            e(f'buffer_load_dwordx4 {a(96 + 4*n, 4)}, {vL16}, {srd(WS)}, {sT1} offen offset:{(n & 1)*1024} sc1', 'halo')
        e(f'buffer_load_dwordx4 {v(PSR, 4)}, v{vA[6]}, {srd(WS)}, {sT4} offen sc1', 'ps')
        loads = [lambda kt=kt, t=t: xload(kt, t) for kt in range(16) for t in (0, 1)]
        lead = P('p1lead1', 4) * 2
        for f in loads[:lead]: f()
        loads = loads[lead:]
        Lh = e.label('hf')
        e(f's_and_b32 {sT0}, {sSB}, 1\ns_cmp_eq_u32 {sT0}, 0\ns_cbranch_scc1 {Lh}')
        put_flag(WS_FH, f's_lshr_b32 {sT0}, {sSB}, 1\ns_add_u32 {sT0}, {sT0}, 1\ns_lshl_b32 {sT0}, {sT0}, 3\ns_add_u32 {sT0}, {sT0}, {sDT}', False)
        e(f'{Lh}:')
        e.wait_vm('ps')
        e(f'v_add_f32 v{PSR}, v{PSR}, v{PSR+2}\nv_add_f32 v{PSR+1}, v{PSR+1}, v{PSR+3}')
        for m_ in ('quad_perm:[1,0,3,2]', 'quad_perm:[2,3,0,1]', 'row_half_mirror'):
            for i in range(2): e(f'v_add_f32_dpp v{PSR+i}, v{PSR+i}, v{PSR+i} {m_} row_mask:0xf bank_mask:0xf')
        ln_stats(f'v{PSR}', f'v{PSR+1}', f'v{FSR}', f'v{FSR+2}', PSR+2)
        fs_store(FSR, 's_mov_b64 exec, 0x101', 3)
        hs0 = P('hstep', 5)
        sched[hs0] = [hflag_load]
        sched[hs0 + 2] = [lambda n=n: halo_load(n) for n in range(4)]
        hb = hs0 + 5
        for p in range(NWE): sched.setdefault(12 + p // 2, []).append(lambda p=p: dma('wo', p, wo_slot(p), 'pf'))
        ts = P('tstep1', 8)
        per_step = 4
        fsl = P('fsl1', 12)
    fl = [f'buffer_load_dwordx4 {v(FSR + 4*i, 4)}, {vP0}, {srd(WS)}, {(sT1, sT1, sFSB)[i]} offen offset:{(0, 256, 0)[i]} sc1' for i in range(3)]
    def fs_loads():
        e(f'v_lshlrev_b32 {vP0}, 4, {vJ}\ns_lshl_b32 {sT1}, {sTB}, 11\ns_sub_u32 {sFSB}, {sT1}, 256\ns_max_i32 {sFSB}, {sFSB}, 0\ns_add_u32 {sFSB}, {sFSB}, {WS_FS(l)}')
        e(f's_lshl_b32 {sT4}, {sW}, 9\ns_add_u32 {sT1}, {sT1}, {sT4}\ns_add_u32 {sT1}, {sT1}, {WS_FS(l)}')
        for f in fl: e(f, 'fs')
    sched.setdefault(fsl, []).append(fs_loads)
    if P('warm', 1):
        for i, f in enumerate(warm_touch()): sched.setdefault(min(15, ts + i), []).append(f)
    if P('pretouch', 1):
        def pt_o():
            e(f's_add_u32 {sT4}, {sOB}, {WS_O(l)}\ns_mov_b64 exec, 0xffff')
            e(f'buffer_load_dword a249, v{vA[11]}, {srd(WS)}, {sT4} offen', 'pf')
            e('s_mov_b64 exec, -1')
        def pt_s():
            e(f's_lshl_b32 {sT4}, {sSB}, 2\ns_add_u32 {sT4}, {sT4}, {sW}\ns_lshl_b32 {sT4}, {sT4}, 3\ns_add_u32 {sT4}, {sT4}, {sDT}\ns_lshl_b32 {sT4}, {sT4}, 8\ns_add_u32 {sT4}, {sT4}, {WS_STAT(l)}')
            e('s_mov_b64 exec, 3')
            e(f'buffer_load_dword a248, v{vA[11]}, {srd(WS)}, {sT4} offen', 'pf')
            e(f's_lshl_b32 {sT4}, {sTB}, 4\ns_add_u32 {sT4}, {sT4}, {sP}\ns_mul_i32 {sT4}, {sT4}, {FSTR}\ns_add_u32 {sT4}, {sT4}, {WS_FLAG(l, 0)}\ns_mov_b64 exec, 1')
            e(f'buffer_load_dword a247, v{vA[11]}, {srd(WS)}, {sT4} offen', 'pf')
            e('s_mov_b64 exec, -1')
        sched.setdefault(ts, []).insert(0, pt_o)
        sched.setdefault(ts + 1, []).insert(0, pt_s)

    NB = 12
    DW = P('p1dw', 4)
    def wreads(ph):
        kt, c = divmod(ph, 6)
        seg, ct = c >> 1, c & 1
        return [p1_tr(a((ph % NB)*4 + 2*h, 2), kt, seg, h, (vA[2*ct], vA[2*ct+1])) for h in (0, 1)]
    def xreads(kt):
        return [f'ds_read_b128 {v(frag(t, kt), 4)}, v{vA[6 + (kt & 1)]} offset:{((kt >> 1) % 3)*SLOT + t*2048}' for t in (0, 1)]
    def hbuf(hk): return 48 + (hk % 4) * 12
    def hreads(hk):
        b = hbuf(hk)
        out = [f'ds_read_b128 {a(b, 4)}, v{vA[8 + (hk & 1)]} offset:{(hk >> 1)*2048}']
        out += [p1_tr(a(b + 4 + 2*h, 2), hk, 0, h, (vA[4], vA[5])) for h in (0, 1)]
        if first: out += [p1_tr(a(b + 8 + 2*h, 2), hk, 0, h, (24, 25)) for h in (0, 1)]
        return out
    def gate(kk):
        if first:
            e.wait_vm(('qkv', kk)); e('s_barrier')
    if first:
        e.wait_vm(('x', 0))
        for r in xreads(0): e(r, ('xf', 0))
    gate(0)
    for ph in range(DW):
        for r in wreads(ph): e(r, ('f', ph))
    slots = list(range(hb * 6, 96))
    hpos = {slots[int(i * len(slots) / 18)]: i for i in range(18)}
    lpos = [int(i * 12 / per_step) for i in range(per_step)]
    for kt in range(16):
        n = 0
        must = sched.pop(kt, [])
        if 'p1st' in EXP and kt % 2 == 0: stamp()
        def slot_ops():
            nonlocal n
            if n in lpos:
                if must: must.pop(0)()
                elif loads: loads.pop(0)()
            n += 1
        if kt == hb:
            e.wait_vm('halo')
            if not first:
                e('s_mov_b32 exec_lo, 0xfffefffe\ns_mov_b32 exec_hi, 0xfffefffe')
                for i in range(4): e(f'ds_write_b128 {vT3}, {a(96 + 4*i, 4)} offset:{1024*i}', 'hw')
                e('s_mov_b64 exec, -1')
                e.wait_lg('hw')
            e('s_barrier')
        if first:
            e.wait_both(('x', (kt+1) >> 1) if kt % 2 == 1 and kt < 15 else None, ('xf', kt))
        else: e.wait_vm(('x', kt))
        for c in range(6):
            ph = kt * 6 + c
            nx = ph + DW
            if nx < 96 and nx % 12 == 0: gate(nx // 12)
            e.wait_lg(('f', ph))
            for t in (0, 1):
                ac = v(acc1(t, c), 4)
                e(f'v_mfma_f32_16x16x32_bf16 {ac}, {a((ph % NB)*4, 4)}, {v(frag(t, kt), 4)}, {"0" if kt == 0 else ac}')
                if nx < 96: e(wreads(nx)[t], ('f', nx))
                if first and kt < 15 and c == 0: e(xreads(kt+1)[t], ('xf', kt+1))
                slot_ops()
            if ph in hpos:
                i = hpos[ph]
                assert not first or i >= 16 or (i >> 1) <= (ph + DW) // 12
                hk = i - 2
                rd = hreads(i) if i < 16 else []
                if hk >= 0:
                    e.wait_lg(('h', hk))
                    b = hbuf(hk)
                    e(f'v_mfma_f32_16x16x32_bf16 {v(HA,4)}, {a(b+4,4)}, {a(b,4)}, {"0" if hk == 0 else v(HA,4)}')
                    for r in rd[:2]: e(r, ('h', i))
                    rd = rd[2:]
                    if first: e(f'v_mfma_f32_16x16x32_bf16 {v(HB,4)}, {a(b+8,4)}, {a(b,4)}, {"0" if hk == 0 else v(HB,4)}')
                for r in rd: e(r, ('h', i))
        while must: must.pop(0)()
    assert not sched
    while loads: loads.pop(0)()
    stamp()
    e(f's_lshl_b32 {sT0}, {sW}, 11\ns_add_u32 {sT0}, {sT0}, {VT}\nv_lshlrev_b32 {vT2}, 6, {vJ}\nv_lshl_add_u32 {vT2}, {vG}, 3, {vT2}\nv_add_u32 {vT0}, {sT0}, {vT2}')
    e(f'v_lshrrev_b32 {vT3}, 2, {vL}\nv_lshlrev_b32 {vT3}, 6, {vT3}\nv_and_b32 {vT1}, 3, {vL}\nv_lshl_add_u32 {vT3}, {vT1}, 3, {vT3}\nv_add_u32 {vT3}, {sT0}, {vT3}')
    e(f's_add_u32 {sT0}, {sM0}, {KX}\nv_add_u32 {vT1}, {sT0}, {vL8}')
    e(f's_lshl_b32 {sT0}, {sMH}, 9\ns_add_u32 {sT0}, {sT0}, {KX}\ns_lshl_b32 {sT2}, {sMH}, 5\ns_add_u32 {sT2}, {sT2}, {VT}')
    e(f's_cmp_lg_u32 {sKH}, 0\ns_cselect_b32 {sT0}, {sT2}, {sT0}\ns_cselect_b64 vcc, -1, 0\nv_cndmask_b32 {vT2}, {vL8}, {vT2}, vcc\nv_add_u32 {vT2}, {sT0}, {vT2}')
    if first:
        e(f's_lshl_b32 {sT0}, {sW}, 6\ns_add_u32 {sT0}, {sT0}, {CSX + 128}\ns_lshl_b32 {sT2}, {sMH}, 6\ns_add_u32 {sT2}, {sT2}, {CSX}')
        e(f'v_lshlrev_b32 v136, 4, {vG}\nv_add_u32 v137, {sT0}, v136\nv_add_u32 v138, {sT2}, v136\nv_add_u32 v136, {CSX}, v136')
        e('s_barrier')
        e('s_mov_b32 exec_lo, 0x00010001\ns_mov_b32 exec_hi, 0x00010001')
        e(f'ds_write_b128 v137, {v(HA,4)}\nds_write_b128 v138, {v(HB,4)}')
        e('s_mov_b64 exec, -1\ns_waitcnt lgkmcnt(0)\ns_barrier')
        for c in range(6): e(f'ds_read_b128 {v(CS + 4*c, 4)}, v136 offset:{64*c}', 'csr')
        for p in range(NWE): q_dma('wo', p, wo_slot(p))
    spin_check('fs', fl, f'v_xor_b32 v{PSR}, v{FSR+1}, {vTAG}\nv_xor_b32 v{PSR+1}, v{FSR+3}, {vTAG}\nv_xor_b32 v{PSR+2}, v{FSR+5}, {vTAG}\nv_xor_b32 v{PSR+3}, v{FSR+7}, {vTAG}\n'
               f'v_or3_b32 v{PSR}, v{PSR}, v{PSR+1}, v{PSR+2}\nv_xor_b32 v{PSR+1}, v{FSR+9}, {vTAG}\nv_xor_b32 v{PSR+2}, v{FSR+11}, {vTAG}\n'
               f'v_or3_b32 v{PSR}, v{PSR}, v{PSR+3}, v{PSR+1}\nv_or_b32 v{PSR}, v{PSR}, v{PSR+2}\nv_cmp_ne_u32 vcc, 0, v{PSR}')
    QP = 176
    KP = 184
    VP = 196
    VW = 208
    def norm(ac, st, cs, dst):
        for i in (0, 2): e(f'v_pk_mul_f32 {v(ac+i,2)}, {v(ac+i,2)}, {v(st,2)} op_sel_hi:[1,0]')
        for i in (0, 2): e(f'v_pk_fma_f32 {v(ac+i,2)}, {v(cs+i,2)}, {v(st+2,2)}, {v(ac+i,2)} op_sel_hi:[1,0,1]')
        e(f'v_cvt_pk_bf16_f32 v{dst}, v{ac}, v{ac+1}\nv_cvt_pk_bf16_f32 v{dst+1}, v{ac+2}, v{ac+3}')
    e.auto = P('auto1', 8) if first else 0
    for r in range(4): e(f'v_mov_b32_dpp v{HB+r}, v{HA+r} row_newbcast:0 row_mask:0xf bank_mask:0xf')
    norm(HA, FSR + 8, HB, VW + 8)
    e(f'ds_write_b64 {vT2}, {v(VW + 8, 2)}', 'exw')
    if first: e.wait_lg('csr')
    for h in (0, 1):
        norm(acc1(1, 2+h), FSR + 4, CS + 4*(2+h), KP + h*6 + 4)
        e(f'ds_write_b64 {vT1}, {v(KP + h*6 + 4, 2)} offset:{1024 + 512*h}', 'exw')
    for t in (1, 0):
        for h in (0, 1):
            norm(acc1(t, 4+h), FSR + 4*t, CS + 4*(4+h), VW + (t*2+h)*2)
            e(f'ds_write_b64 {vT0}, {v(VW + (t*2+h)*2, 2)} offset:{1024 + 1024*t + 32*h}', 'exw')
    for h in (0, 1): norm(acc1(0, 2+h), FSR, CS + 4*(2+h), KP + h*6 + 2)
    e('s_waitcnt lgkmcnt(0)\ns_barrier')
    for h in (0, 1): e(f'ds_read_b64 {v(KP + 6*h, 2)}, {vT1} offset:{512*h}', 'exk')
    for h in (0, 1):
        for tt in range(3): e(f'ds_read_b64_tr_b16 {v(VP + 6*h + 2*tt, 2)}, {vT3} offset:{1024*tt + 32*h}', 'exv')
    for p in range(12, 16): q_dma('wo', p, wo_slot(p))
    e.auto = P('auto2', 8)
    for t in (1, 0):
        for h in (0, 1): norm(acc1(t, h), FSR + 4*t, CS + 4*h, QP + (t*2+h)*2)
    stamp()
    SP, SCU = 64, 80
    combos = [(1, 0), (1, 1), (0, 0), (0, 1)]
    for n, (t, h) in enumerate(combos):
        q = v(QP + (t*2 + h)*2, 2)
        if n == 2: e.wait_lg('exk')
        e(f'v_mfma_f32_16x16x16_bf16 {v(SCU + 4*n, 4)}, {v(KP + h*6 + 2*(t+1), 2)}, {q}, 0')
        e(f'v_mfma_f32_16x16x16_bf16 {v(SP + 4*n, 4)}, {v(KP + h*6 + 2*t, 2)}, {q}, {v(NEG,4) if t == 0 else "0"}')
    SV = 96
    MX = 104
    for n in range(4):
        for u in range(2):
            e(f'v_cndmask_b32 v{SCU+4*n+2*u}, v{SCU+4*n+2*u}, v{SCU+4*n+2*u+1}, {sPAR}')
            e(f'v_cndmask_b32 v{SP+4*n+2*u}, v{SP+4*n+2*u}, v{SP+4*n+2*u+1}, {sPAR}')
        for u in range(2):
            e(f'v_cndmask_b32 v{SV+2*n+u}, v{SP+4*n+2*u}, v{SCU+4*n+2*u}, {(sCUR0, sCUR1)[u]}')
        e(f'v_max_f32 v{MX+2*n}, v{SV+2*n}, v{SV+2*n+1}')
    e.drain(); e.auto = 0
    M0_, M1_, M2_, M3_ = MX, MX+2, MX+4, MX+6
    e(f'v_permlane32_swap_b32 v{M0_}, v{M1_}\nv_permlane32_swap_b32 v{M2_}, v{M3_}')
    e(f'v_max_f32 v{M0_}, v{M0_}, v{M1_}\nv_max_f32 v{M2_}, v{M2_}, v{M3_}')
    e(f'v_permlane16_swap_b32 v{M0_}, v{M2_}\nv_max_f32 v{M0_}, v{M0_}, v{M2_}')
    cexp = 0.25 * math.log2(math.e)
    e(f's_mov_b32 {sC1}, {hx(f2u(cexp))}')
    e(f'v_mul_f32 v{M0_}, {hx(f2u(-cexp))}, v{M0_}')
    e(f'v_mov_b32 v{M2_}, v{M0_}\nv_permlane16_swap_b32 v{M0_}, v{M2_}')
    e(f'v_mov_b32 v{M1_}, v{M0_}\nv_mov_b32 v{M3_}, v{M2_}')
    e(f'v_permlane32_swap_b32 v{M0_}, v{M1_}\nv_permlane32_swap_b32 v{M2_}, v{M3_}')
    PB = 64
    OA = 80
    SMA = 136
    for n in range(4):
        for u in range(2): e(f'v_fma_f32 v{SV+2*n+u}, v{SV+2*n+u}, {sC1}, v{MX+2*n}')
    for n in range(4):
        for u in range(2): e(f'v_exp_f32 v{SV+2*n+u}, v{SV+2*n+u}')
    for n in range(4): e(f'v_cvt_pk_bf16_f32 v{SV+2*n}, v{SV+2*n}, v{SV+2*n+1}')
    e.wait_lg('exv')
    for n, (t, h) in enumerate(combos):
        for i, sel in enumerate((SELP0, SELP1, SELC0, SELC1)):
            e(f'v_perm_b32 v{PB+4*n+i}, v{SV+2*n}, v{SV+2*n}, {sel}')
        if n:
            m, (t2, h2) = n - 1, combos[n-1]
            e(f'v_mfma_f32_16x16x32_bf16 {v(SMA+4*m,4)}, {v(ONES,4)}, {v(PB+4*m,4)}, 0')
            e(f'v_mfma_f32_16x16x32_bf16 {v(OA+4*m,4)}, {v(VP + h2*6 + 2*t2, 4)}, {v(PB+4*m,4)}, 0')
    e(f's_add_u32 {sT0}, {sOB}, {WS_O(l)}\ns_add_u32 {sT1}, {sT0}, 16384')
    e(f'v_mfma_f32_16x16x32_bf16 {v(SMA+12,4)}, {v(ONES,4)}, {v(PB+12,4)}, 0')
    e(f'v_mfma_f32_16x16x32_bf16 {v(OA+12,4)}, {v(VP + 6, 4)}, {v(PB+12,4)}, 0')
    OP = 96
    for n, (t, h) in enumerate(combos):
        e(f'v_rcp_f32 v{SMA+4*n}, v{SMA+4*n}')
        for i in (0, 2): e(f'v_pk_mul_f32 {v(OA+4*n+i,2)}, {v(OA+4*n+i,2)}, {v(SMA+4*n,2)} op_sel_hi:[1,0]')
        d = OP + t*4 + h*2
        e(f'v_cvt_pk_bf16_f32 v{d}, v{OA+4*n}, v{OA+4*n+1}\nv_cvt_pk_bf16_f32 v{d+1}, v{OA+4*n+2}, v{OA+4*n+3}')
        if h == 1:
            hstore(f'buffer_store_dwordx4 {v(OP + t*4, 4)}, {vL16}, {srd(WS)}, {(sT0, sT1)[t]} offen', 'ost', True)
    assert not e.side, len(e.side)
    stamp()
    publish(WS_FLAG(l, 0), f's_lshl_b32 {sT0}, {sTB}, 4\ns_add_u32 {sT0}, {sT0}, {sP}', True)
    for p in range(NWE, 12): dma('wo', p, wo_slot(p), 'pf')
    q_big('w1', 18, 28)
    e.drain(P('wa_drain', 6))

def p2_addr():
    e(f'v_lshrrev_b32 {vT0}, 2, {vL}')
    e(f'v_lshrrev_b32 {vT1}, 3, {vL}\nv_and_b32 {vT1}, 3, {vT1}')
    e(f'v_lshlrev_b32 {vT0}, 7, {vT0}\nv_lshl_add_u32 {vT0}, {vT1}, 5, {vT0}')
    e(f'v_and_b32 {vT1}, 3, {vL}\nv_lshl_add_u32 {vT0}, {vT1}, 3, {vT0}')
    for sg in range(4):
        e(f'v_xor_b32 v{vA[sg]}, {32*sg}, {vT0}')
        e(f'v_add_u32 v{vA[4+sg]}, {24*SLOT}, v{vA[sg]}')

def p2_tr(dst, slot, sg, h):
    st = slot // 24
    return f'ds_read_b64_tr_b16 {dst}, v{vA[st*4+sg]} offset:{(slot - st*24)*SLOT + h*2048}'

RS = 128
def phase2(l):
    p2_addr()
    AC = 64
    for ct in range(4):
        e(f'v_lshlrev_b32 v{AC+4*ct}, 16, v{CARRY+2*ct}\nv_and_b32 v{AC+4*ct+1}, 0xffff0000, v{CARRY+2*ct}')
        e(f'v_lshlrev_b32 v{AC+4*ct+2}, 16, v{CARRY+2*ct+1}\nv_and_b32 v{AC+4*ct+3}, 0xffff0000, v{CARRY+2*ct+1}')
    poll(WS_FLAG(l, 0), f's_lshr_b32 {sT0}, {sSB}, 1\ns_lshl_b32 {sT0}, {sT0}, 4', 16)
    stamp()
    OF = 128
    e(f's_lshl_b32 {sT0}, {sSB}, 2\ns_add_u32 {sT0}, {sT0}, {sW}\ns_lshl_b32 {sT0}, {sT0}, 14\ns_add_u32 {sT0}, {sT0}, {WS_O(l)}')
    def oload(p):
        if p and p % 4 == 0: e(f's_add_u32 {sT0}, {sT0}, 4096')
        e(f'buffer_load_dwordx4 {v(OF + 4*p, 4)}, {vL16}, {srd(WS)}, {sT0} offen offset:{(p % 4)*1024} sc1', ('o', p))
    lead = P('p2lead', 12)
    for p in range(lead): oload(p)
    NB, DW = 12, P('p2dw', 7)
    def reads(ph):
        p, ct = divmod(ph, 4)
        return [p2_tr(a((ph % NB)*4 + 2*h, 2), wo_slot(p), ct, h) for h in (0, 1)]
    for ph in range(DW):
        for r in reads(ph): e(r, ('f2', ph))
    AC = 64
    for p in range(16):
        for ct in range(4):
            ph = 4*p + ct
            e.wait_both(('o', p) if ct == 0 else None, ('f2', ph))
            ac = v(AC + 4*ct, 4)
            e(f'v_mfma_f32_16x16x32_bf16 {ac}, {a((ph % NB)*4, 4)}, {v(OF + 4*p, 4)}, {ac}')
            if ph + DW < 64:
                for r in reads(ph + DW): e(r, ('f2', ph + DW))
            if ct == 0:
                if p + lead < 16: oload(p + lead)
                else: e.drain(1)
    stamp()
    S_, Q_ = 96, 98
    e(f'v_pk_add_f32 {v(S_,2)}, {v(AC,2)}, {v(AC+2,2)}\nv_pk_mul_f32 {v(Q_,2)}, {v(AC,2)}, {v(AC,2)}')
    for i in range(2, 16, 2):
        e(f'v_pk_fma_f32 {v(Q_,2)}, {v(AC+i,2)}, {v(AC+i,2)}, {v(Q_,2)}')
        if i >= 4: e(f'v_pk_add_f32 {v(S_,2)}, {v(S_,2)}, {v(AC+i,2)}')
    e(f'v_add_f32 v{S_}, v{S_}, v{S_+1}\nv_add_f32 v{Q_}, v{Q_}, v{Q_+1}')
    e(f's_lshl_b32 {sT0}, {sSB}, 2\ns_add_u32 {sT0}, {sT0}, {sW}\ns_lshl_b32 {sT0}, {sT0}, 11\ns_add_u32 {sT0}, {sT0}, {WS_STAT(l)}')
    e(f'v_permlane32_swap_b32 v{S_}, v{Q_}\nv_add_f32 v{S_}, v{S_}, v{Q_}\nv_mov_b32 v{Q_}, v{S_}')
    e(f's_lshl_b32 {sT1}, {sDT}, 8\ns_add_u32 {sT1}, {sT1}, {sT0}')
    e(f'v_lshrrev_b32 {vT0}, 1, {vG}\nv_lshlrev_b32 {vT0}, 3, {vT0}\nv_lshl_add_u32 {vT0}, {vJ}, 4, {vT0}')
    e(f'v_permlane16_swap_b32 v{S_}, v{Q_}\nv_add_f32 v{S_}, v{S_}, v{Q_}\nv_mov_b32 v{S_+1}, {vTAG}')
    hstore(f'buffer_store_dwordx2 {v(S_, 2)}, {vT0}, {srd(WS)}, {sT1} offen', 'gran', True)
    XP = 100
    e(f's_lshl_b32 {sT1}, {sW}, 11\ns_add_u32 {sT1}, {sT1}, {SC}\nv_lshlrev_b32 {vT1}, 7, {vJ}\nv_lshl_add_u32 {vT1}, {vG}, 3, {vT1}\nv_add_u32 {vT1}, {sT1}, {vT1}')
    for ct in range(4):
        e(f'v_cvt_pk_bf16_f32 v{XP+2*ct}, v{AC+4*ct}, v{AC+4*ct+1}\nv_cvt_pk_bf16_f32 v{XP+2*ct+1}, v{AC+4*ct+2}, v{AC+4*ct+3}')
        e(f'ds_write_b64 {vT1}, {v(XP+2*ct, 2)} offset:{8192 + 32*ct}', 'x1w')
    e.drain()
    e(f'v_lshrrev_b32 {vT0}, 5, {vL}\nv_lshlrev_b32 {vT0}, 2, {vT0}\nv_lshrrev_b32 {vT2}, 2, {vL}\nv_and_b32 {vT2}, 3, {vT2}\nv_add_u32 {vT0}, {vT0}, {vT2}\nv_lshlrev_b32 {vT0}, 7, {vT0}')
    e(f'v_and_b32 {vT2}, 1, {vG}\nv_lshl_add_u32 {vT0}, {vT2}, 5, {vT0}\nv_and_b32 {vT2}, 1, {vL}\nv_lshl_add_u32 {vT0}, {vT2}, 4, {vT0}\nv_and_b32 {vT2}, 2, {vL}\nv_lshl_add_u32 {vT0}, {vT2}, 2, {vT0}')
    e(f's_lshl_b32 {sT2}, {sKH}, 6\ns_lshl_b32 {sT1}, {sMH}, 12\ns_add_u32 {sT2}, {sT2}, {sT1}\ns_add_u32 {sT2}, {sT2}, {SC}\nv_add_u32 {vT0}, {sT2}, {vT0}')
    e(f's_lshl_b32 {sT2}, {sKH}, 12\ns_lshl_b32 {sT1}, {sMH}, 6\ns_add_u32 {sT2}, {sT2}, {sT1}\ns_add_u32 {sT2}, {sT2}, {SC + 8192}')
    e(f'v_and_b32 {vT2}, 31, {vL}\nv_lshlrev_b32 {vT2}, 7, {vT2}\nv_lshrrev_b32 {vT3}, 5, {vL}\nv_lshl_add_u32 {vT2}, {vT3}, 4, {vT2}\nv_add_u32 {vT2}, {sT2}, {vT2}')
    e(f's_lshl_b32 {sT2}, {sDT}, 1\ns_add_u32 {sT2}, {sT2}, {sKH}\ns_lshl_b32 {sT2}, {sT2}, 17\ns_lshl_b32 {sT1}, {sSB}, 1\ns_add_u32 {sT1}, {sT1}, {sMH}\ns_lshl_b32 {sT1}, {sT1}, 11\ns_add_u32 {sT2}, {sT2}, {sT1}\ns_add_u32 {sT2}, {sT2}, {WS_H2(l)}')
    G0 = 108
    L = e.label('stat'); Ld = L + '_d'
    e(f's_mov_b32 {sCNT}, 30000')
    e(f'{L}:')
    e(f'buffer_load_dwordx4 {v(G0, 4)}, {vL16}, {srd(WS)}, {sT0} offen sc1', 'gp')
    e(f'buffer_load_dwordx4 {v(G0+4, 4)}, {vL16}, {srd(WS)}, {sT0} offen offset:1024 sc1', 'gp')
    e('s_waitcnt vmcnt(0)')
    e(f'v_xor_b32 v{G0+1}, v{G0+1}, {vTAG}\nv_xor_b32 v{G0+3}, v{G0+3}, {vTAG}\nv_xor_b32 v{G0+5}, v{G0+5}, {vTAG}\nv_xor_b32 v{G0+7}, v{G0+7}, {vTAG}')
    e(f'v_or_b32 v{G0+1}, v{G0+1}, v{G0+3}\nv_or3_b32 v{G0+1}, v{G0+1}, v{G0+5}, v{G0+7}')
    e(f'v_cmp_ne_u32 vcc, 0, v{G0+1}')
    e(f's_cbranch_vccz {Ld}')
    e(f's_sub_u32 {sCNT}, {sCNT}, 1\ns_cmp_lg_u32 {sCNT}, 0\ns_cbranch_scc1 {L}')
    e(f'{Ld}:')
    stamp()
    e(f'v_add_f32 v{S_}, v{G0}, v{G0+4}\nv_add_f32 v{Q_}, v{G0+2}, v{G0+6}')
    for sw in ('v_permlane32_swap_b32', 'v_permlane16_swap_b32'):
        e(f'v_mov_b32 v{S_+1}, v{S_}\nv_mov_b32 v{Q_+1}, v{Q_}')
        e(f'{sw} v{S_}, v{S_+1}\n{sw} v{Q_}, v{Q_+1}')
        e(f'v_add_f32 v{S_}, v{S_}, v{S_+1}\nv_add_f32 v{Q_}, v{Q_}, v{Q_+1}')
    ln_stats(f'v{S_}', f'v{Q_}', f'v{S_+1}', f'v{Q_+1}', G0, double=True)
    for ct in range(4):
        for i in (4*ct, 4*ct+2): e(f'v_pk_fma_f32 {v(AC+i,2)}, {v(AC+i,2)}, {v(S_,2)}, {v(Q_,2)} op_sel:[0,1,1] op_sel_hi:[1,1,1]')
        e(f'v_cvt_pk_bf16_f32 v{XP+2*ct}, v{AC+4*ct}, v{AC+4*ct+1}\nv_cvt_pk_bf16_f32 v{XP+2*ct+1}, v{AC+4*ct+2}, v{AC+4*ct+3}')
        e(f'ds_write_b64 {vT1}, {v(XP+2*ct, 2)} offset:{32*ct}', 'h2w')
    e('s_waitcnt lgkmcnt(0)\ns_barrier')
    HP = 80
    for kp in range(2):
        for h in range(2):
            e(f'ds_read_b64_tr_b16 {v(HP + 4*kp + 2*h, 2)}, {vT0} offset:{(16*kp + 8*h)*RS}', ('h2r', kp))
    for t in range(2): e(f'ds_read_b128 {v(CARRY + 4*t, 4)}, {vT2} offset:{32*t}', 'x1r')
    for kp in range(2):
        e.wait_lg(('h2r', kp))
        e(f'buffer_store_dwordx4 {v(HP + 4*kp, 4)}, {vL16}, {srd(WS)}, {sT2} offen offset:{1024*kp} sc1', 'h2st')
    stamp()
    e('s_waitcnt lgkmcnt(0)')
    publish(WS_FLAG(l, 1), f's_lshl_b32 {sT0}, {sDT}, 5\ns_add_u32 {sT0}, {sT0}, {sSB}')

def big_loop(kind, act_base_code, mid_cb, init_cb):
    nt = NT[kind]
    e(act_base_code)
    def areg(t, u): return 128 + (t % 13) * 8 + 4 * u
    def aload(t, u):
        if u == 0 and t and t % 2 == 0: e(f's_add_u32 {sXA}, {sXA}, 4096')
        e(f'buffer_load_dwordx4 {v(areg(t, u), 4)}, {vL16}, {srd(WS)}, {sXA} offen offset:{((t % 2)*2 + u)*1024} sc1', ('act', t, u))
    lead = P('lead', 7)
    for t in range(lead):
        for u in (0, 1): aload(t, u)
    FB = 96
    AC = 64
    NB, DW = 8, P('dw', 6)
    def reads(ph):
        t, f = divmod(ph, 4)
        return [big_tr(v(FB + (ph % NB)*4 + 2*h, 2), pair_of(kind, t), f >> 1, f & 1, h) for h in (0, 1)]
    for ph in range(DW):
        for r in reads(ph): e(r, (kind + 'f', ph))
    init_cb()
    e(f's_lshl_b32 {sT2}, {sW}, 12\ns_add_u32 {sT2}, {sT2}, {SC}\nv_add_u32 {vT0}, {sT2}, {vL16}\nv_xor_b32 {vT1}, 8192, {vT0}')
    for t in range(nt):
        if t == 18:
            e('s_barrier')
            mid_cb()
        for f in ((0, 1, 2, 3) if t < nt - 1 else (1, 3, 0, 2)):
            u, sg = f >> 1, f & 1
            ph = 4*t + f
            e.wait_both(('act', t, u) if sg == (0 if t < nt - 1 else 1) else None, (kind + 'f', ph) if t < 18 else None)
            ac = v(AC + 16*sg, 16)
            W_ = v(FB + (ph % NB)*4, 4) if t < 18 else a(areg_of(kind, t) + 4*f, 4)
            X_ = v(areg(t, u), 4)
            A, B = (W_, X_) if kind == 'w1' else (X_, W_)
            e(f'v_mfma_f32_32x32x16_bf16 {ac}, {A}, {B}, {"0" if t == 0 and u == 0 and sg == 1 else ac}')
            if ph + DW < 72:
                for r in reads(ph + DW): e(r, (kind + 'f', ph + DW))
            if sg == 0:
                if t + lead < nt: aload(t + lead, u)
                else: e.drain(1)
    stamp()
    assert SC % 16384 == 0
    for i in range(4): e(f'ds_write_b128 {vT0}, {v(AC + 16 + 4*i, 4)} offset:{1024*i}', 'xw')
    e('s_waitcnt lgkmcnt(0)\ns_barrier')
    for i in range(4): e(f'ds_read_b128 {v(96 + 4*i, 4)}, {vT1} offset:{1024*i}', ('xr', i))
    e.drain(P('xdrain', 2))

def w2_window():
    q_big('w2', 0, 8); e.drain()
    preread('w2', 18, 28)
    e('s_waitcnt lgkmcnt(0)\ns_barrier')
    q_big('w2', 8, 18); e.drain()

def phase3(l):
    Lskip, Lend = e.label('p3skip'), e.label('p3end')
    e(f's_cmp_ge_u32 {sI}, 28\ns_cbranch_scc1 {Lskip}')
    for t in range(28, 32):
        for kh in (0, 1): dma('w1', kh*32 + t, pair_of('w1', t)*2 + kh, 'wB')
    q_big('w1', 0, 4); e.drain()
    preread('w1', 18, 28)
    e('s_waitcnt lgkmcnt(0)'); e.wait_vm('wB'); e('s_barrier')
    preread('w1', 28, 32)
    q_big('w1', 4, 14); e.drain()
    e('s_waitcnt lgkmcnt(0)\ns_barrier')
    q_big('w1', 14, 18); e.drain()
    e(f's_lshl_b32 {sT0}, {sKH}, 6\ns_add_u32 {sT0}, {sT0}, {sBW1}\nv_lshrrev_b32 {vT0}, 5, {vL}\nv_lshlrev_b32 {vT0}, 3, {vT0}')
    for b in range(4): e(f'buffer_load_dwordx2 {v(BIAS + 2*b, 2)}, {vT0}, {srd(B1)}, {sT0} offen offset:{16*b}', 'b1')
    poll(WS_FLAG(l, 1), f's_lshl_b32 {sT0}, {sDT3}, 5', 32)
    stamp()
    AC = 64
    k0 = -2.0 * math.sqrt(2.0 / math.pi) * math.log2(math.e)
    def init():
        for b in range(8):
            e(f'v_lshlrev_b32 v{AC+2*b}, 16, v{BIAS+b}\nv_and_b32 v{AC+2*b+1}, 0xffff0000, v{BIAS+b}')
        e(f'v_mov_b32 v{BIAS}, {hx(f2u(k0 * 0.044715))}\nv_mov_b32 v{BIAS+2}, {hx(f2u(k0))}')
        e(f's_lshl_b32 {sT0}, {sDT3}, 1\ns_add_u32 {sT0}, {sT0}, {sMH}\ns_mul_i32 {sT0}, {sT0}, 56\ns_lshl_b32 {sT1}, {sFT}, 1\ns_add_u32 {sT0}, {sT0}, {sT1}\ns_add_u32 {sT0}, {sT0}, {sKH}')
        e(f's_lshl_b32 {sT0}, {sT0}, 11\ns_add_u32 {sT0}, {sT0}, {WS_U(l)}')
    big_loop('w1', f's_lshl_b32 {sXA}, {sDT3}, 1\ns_add_u32 {sXA}, {sXA}, {sMH}\ns_lshl_b32 {sXA}, {sXA}, 1\ns_add_u32 {sXA}, {sXA}, {sKH}\n'
             f's_lshl_b32 {sXA}, {sXA}, 16\ns_add_u32 {sXA}, {sXA}, {WS_H2(l)}', lambda: q_big('w2', 18, 28), init)
    TT = 80
    UP = 116
    e.auto = P('auto3', 8)
    for m in (0, 1):
        for i in (2*m, 2*m+1):
            e(f's_waitcnt lgkmcnt({3-i})')
            for r in (0, 2): e(f'v_pk_add_f32 {v(AC+4*i+r,2)}, {v(AC+4*i+r,2)}, {v(96+4*i+r,2)}')
        idx = range(8*m, 8*m+8); id2 = range(8*m, 8*m+8, 2)
        for i in id2: e(f'v_pk_mul_f32 {v(TT+i,2)}, {v(AC+i,2)}, {v(AC+i,2)}')
        for i in id2: e(f'v_pk_fma_f32 {v(TT+i,2)}, {v(TT+i,2)}, {v(BIAS,2)}, {v(BIAS+2,2)} op_sel_hi:[1,0,0]')
        for i in id2: e(f'v_pk_mul_f32 {v(TT+i,2)}, {v(TT+i,2)}, {v(AC+i,2)}')
        for i in idx: e(f'v_exp_f32 v{TT+i}, v{TT+i}')
        for i in id2: e(f'v_pk_add_f32 {v(TT+i,2)}, {v(TT+i,2)}, 1.0 op_sel_hi:[1,0]')
        for i in idx: e(f'v_rcp_f32 v{TT+i}, v{TT+i}')
        for i in id2: e(f'v_pk_mul_f32 {v(AC+i,2)}, {v(AC+i,2)}, {v(TT+i,2)}')
        for i in range(4): e(f'v_cvt_pk_bf16_f32 v{UP+4*m+i}, v{AC+8*m+2*i}, v{AC+8*m+2*i+1}')
        if m == 0: e.drain(); e.auto = 0
        e(f'buffer_store_dwordx4 {v(UP+4*m, 4)}, {vL16}, {srd(WS)}, {sT0} offen offset:{1024*m} sc1', 'ust')
    stamp()
    publish(WS_FLAG(l, 2), f's_lshl_b32 {sT0}, {sDT3}, 5\ns_add_u32 {sT0}, {sT0}, {sFT}')
    e(f's_branch {Lend}')
    e(f'{Lskip}:')
    if P('w2warm', 1):
        e(f'v_lshrrev_b32 {vT0}, 2, {vL}\nv_lshlrev_b32 {vT0}, 12, {vT0}\nv_and_b32 {vT1}, 3, {vL}\nv_lshl_add_u32 {vT0}, {vT1}, 7, {vT0}')
        e(f's_and_b32 {sT0}, {sI}, 3\ns_lshl_b32 {sT0}, {sT0}, 2\ns_add_u32 {sT0}, {sT0}, {sW}\ns_mul_i32 {sT0}, {sT0}, {112*4096}\ns_lshl_b32 {sT1}, {sX}, 9\ns_add_u32 {sT0}, {sT0}, {sT1}')
        for q in range(7):
            e(f'buffer_load_dword v{64+q}, {vT0}, {srd(W2)}, {sT0} offen', 'pf')
            e(f's_add_u32 {sT0}, {sT0}, {16*4096}')
    q_big('w2', 18, 28); e.drain()
    e('s_waitcnt vmcnt(0)\ns_barrier')
    e(f'{Lend}:')
    w2_window()

def phase4(l):
    last = l == 1
    e(f's_lshl_b32 {sT0}, {sKH}, 6\ns_add_u32 {sT0}, {sT0}, {sBW2}\nv_and_b32 {vT0}, 31, {vL}\nv_lshlrev_b32 {vT0}, 1, {vT0}')
    e(f'buffer_load_ushort v{BIAS}, {vT0}, {srd(B2)}, {sT0} offen', 'b2')
    if not last and P('pretouch', 1):
        e(f's_lshl_b32 {sT0}, {sSB}, 1\ns_add_u32 {sT0}, {sT0}, {sKH}\ns_lshl_b32 {sT0}, {sT0}, 15')
        e(f's_lshl_b32 {sT1}, {sDT}, 1\ns_add_u32 {sT1}, {sT1}, {sMH}\ns_lshl_b32 {sT1}, {sT1}, 10\ns_add_u32 {sT0}, {sT0}, {sT1}\ns_add_u32 {sT0}, {sT0}, {WS_X2}')
        e(f's_mov_b64 exec, 0xffff\nbuffer_load_dword v{BIAS+1}, v{vA[11]}, {srd(WS)}, {sT0} offen', 'pf')
        e(f's_lshl_b32 {sT0}, {sSB}, 3\ns_add_u32 {sT0}, {sT0}, {sDT}\ns_mul_i32 {sT0}, {sT0}, {FSTR}\ns_add_u32 {sT0}, {sT0}, {WS_FLAG(l, 3)}')
        e(f's_mov_b64 exec, 1\nbuffer_load_dword v{BIAS+3}, v{vA[11]}, {srd(WS)}, {sT0} offen', 'pf')
        e(f's_lshl_b32 {sT0}, {sSB}, 3\ns_add_u32 {sT0}, {sT0}, {sDT}\ns_lshl_b32 {sT0}, {sT0}, 2\ns_add_u32 {sT0}, {sT0}, {sW}\ns_lshl_b32 {sT0}, {sT0}, 8\ns_add_u32 {sT0}, {sT0}, {WS_PS}')
        e(f's_mov_b64 exec, 3\nbuffer_load_dword v{BIAS+4}, v{vA[11]}, {srd(WS)}, {sT0} offen\ns_mov_b64 exec, -1', 'pf')
    poll(WS_FLAG(l, 2), f's_lshl_b32 {sT0}, {sDT}, 5', 28)
    stamp()
    def mid():
        if not last:
            for sl in range(24): q_dma('qkv', sl, sl)
    AC = 64
    def init():
        e(f'v_lshlrev_b32 v{BIAS}, 16, v{BIAS}')
        for i in range(8):
            e(f'v_lshlrev_b32 v{AC+2*i}, 16, v{CARRY+i}\nv_and_b32 v{AC+2*i+1}, 0xffff0000, v{CARRY+i}')
        for i in range(0, 16, 2): e(f'v_pk_add_f32 {v(AC+i,2)}, {v(AC+i,2)}, {v(BIAS,2)} op_sel_hi:[1,0]')
        e(f's_lshl_b32 {sT0}, {sSB}, 1\ns_add_u32 {sT0}, {sT0}, {sKH}\nv_lshrrev_b32 {vT3}, 5, {vL}')
        if last:
            e(f's_lshl_b32 {sT0}, {sT0}, 15\ns_add_u32 {sT0}, {sT0}, {sBWO}\ns_lshl_b32 {sT1}, {sMH}, 6\ns_add_u32 {sT0}, {sT0}, {sT1}')
            e(f'v_and_b32 {vT2}, 31, {vL}\nv_lshlrev_b32 {vT2}, 10, {vT2}\nv_lshl_add_u32 {vT2}, {vT3}, 4, {vT2}')
        else:
            e(f's_lshl_b32 {sT1}, {sDT}, 1\ns_add_u32 {sT1}, {sT1}, {sMH}\ns_lshl_b32 {sXB}, {sT0}, 12\ns_lshl_b32 {sT4}, {sT1}, 3\ns_add_u32 {sXB}, {sXB}, {sT4}\ns_add_u32 {sXB}, {sXB}, {WS_PS}')
            e(f'v_and_b32 v{BIAS+2}, 31, {vL}\nv_lshlrev_b32 v{BIAS+2}, 7, v{BIAS+2}\nv_lshl_add_u32 v{BIAS+2}, {vT3}, 2, v{BIAS+2}')
            e(f's_lshl_b32 {sT0}, {sT0}, 15\ns_lshl_b32 {sT1}, {sT1}, 10\ns_add_u32 {sT0}, {sT0}, {sT1}\ns_add_u32 {sT0}, {sT0}, {WS_X2}')
            e(f'v_and_b32 {vT2}, 1, {vG}\nv_lshlrev_b32 {vT2}, 14, {vT2}\nv_lshl_add_u32 {vT2}, {vT3}, 8, {vT2}\nv_lshl_add_u32 {vT2}, {vJ}, 4, {vT2}')
    big_loop('w2', f's_lshl_b32 {sXA}, {sDT}, 1\ns_add_u32 {sXA}, {sXA}, {sMH}\ns_lshl_b32 {sXA}, {sXA}, 1\ns_add_u32 {sXA}, {sXA}, {sKH}\n'
             f's_mul_i32 {sXA}, {sXA}, {56*1024}\ns_add_u32 {sXA}, {sXA}, {WS_U(l)}', mid, init)
    XP = 80
    for m in range(2):
        for i in (2*m, 2*m+1):
            e(f's_waitcnt lgkmcnt({3-i})')
            for r in (0, 2): e(f'v_pk_add_f32 {v(AC+4*i+r,2)}, {v(AC+4*i+r,2)}, {v(96+4*i+r,2)}')
        for i in range(4): e(f'v_cvt_pk_bf16_f32 v{XP+4*m+i}, v{AC+8*m+2*i}, v{AC+8*m+2*i+1}')
        if last: e(f'buffer_store_dwordx4 {v(XP+4*m, 4)}, {vT2}, {srd(OUTS)}, {sT0} offen offset:{32*m}', 'xst')
        else: hstore(f'buffer_store_dwordx4 {v(XP+4*m, 4)}, {vT2}, {srd(WS)}, {sT0} offen offset:{512*m}', 'xst', True)
    if not last:
        S2, Q2 = 96, 98
        e(f'v_pk_add_f32 {v(S2,2)}, {v(AC,2)}, {v(AC+2,2)}\nv_pk_mul_f32 {v(Q2,2)}, {v(AC,2)}, {v(AC,2)}')
        for i in range(2, 16, 2):
            e(f'v_pk_fma_f32 {v(Q2,2)}, {v(AC+i,2)}, {v(AC+i,2)}, {v(Q2,2)}')
            if i >= 4: e(f'v_pk_add_f32 {v(S2,2)}, {v(S2,2)}, {v(AC+i,2)}')
        e(f'v_add_f32 v{S2}, v{S2}, v{S2+1}\nv_add_f32 v{Q2}, v{Q2}, v{Q2+1}')
        e(f'v_permlane32_swap_b32 v{S2}, v{Q2}\nv_add_f32 v{S2}, v{S2}, v{Q2}')
        hstore(f'buffer_store_dword v{S2}, v{BIAS+2}, {srd(WS)}, {sXB} offen', 'pst', True)
    stamp()
    if last: return
    publish(WS_FLAG(l, 3), f's_lshl_b32 {sT0}, {sSB}, 3\ns_add_u32 {sT0}, {sT0}, {sDT}', True)
    Lh = e.label('hc')
    e(f's_and_b32 {sT0}, {sSB}, {sKH}\ns_and_b32 {sT0}, {sT0}, 1\ns_cmp_eq_u32 {sT0}, 0\ns_cbranch_scc1 {Lh}')
    e(f's_lshr_b32 {sT0}, {sSB}, 1\ns_lshl_b32 {sT0}, {sT0}, 14\ns_add_u32 {sT0}, {sT0}, {sT1}\ns_add_u32 {sT0}, {sT0}, {WS_XH}')
    e('s_mov_b32 exec_lo, 0xffff0000\ns_mov_b32 exec_hi, 0xffff0000')
    for m in range(2):
        e(f'buffer_store_dwordx4 {v(XP+4*m, 4)}, {vT2}, {srd(WS)}, {sT0} offen offset:{512*m} sc1', None); e.vm.pop()
    e(f's_mov_b64 exec, -1\n{Lh}:')
    e(f's_lshl_b32 {sT0}, {sKH}, 12\ns_lshl_b32 {sT1}, {sMH}, 6\ns_add_u32 {sT0}, {sT0}, {sT1}\ns_add_u32 {sT0}, {sT0}, {SC}')
    e(f'v_and_b32 {vT2}, 31, {vL}\nv_lshlrev_b32 {vT2}, 7, {vT2}\nv_lshl_add_u32 {vT2}, {vT3}, 4, {vT2}\nv_add_u32 {vT2}, {sT0}, {vT2}')
    for m in range(2): e(f'ds_write_b128 {vT2}, {v(XP+4*m, 4)} offset:{32*m}', 'x2w')
    e(f's_lshl_b32 {sT1}, {sW}, 11\ns_add_u32 {sT1}, {sT1}, {SC}\nv_lshlrev_b32 {vT1}, 7, {vJ}\nv_lshl_add_u32 {vT1}, {vG}, 3, {vT1}\nv_add_u32 {vT1}, {sT1}, {vT1}')
    e('s_waitcnt lgkmcnt(0)\ns_barrier')
    for ct in range(4): e(f'ds_read_b64 {v(CARRY+2*ct, 2)}, {vT1} offset:{32*ct}', 'x2r')
    e.drain()
    e('s_waitcnt lgkmcnt(0)\ns_barrier')

def epilogue():
    L = e.label('ep')
    e(f's_or_b32 {sT0}, s2, {sW}\ns_cmp_lg_u32 {sT0}, 0\ns_cbranch_scc1 {L}')
    e(f'v_mov_b32 {vT0}, 0\ns_mov_b64 exec, 1')
    e(f'buffer_store_dword {vTAG}, {vT0}, {srd(WS)}, 0 offen sc1')
    e('s_mov_b64 exec, -1')
    e(f'{L}:')
    if STAMPS:
        stamp(); cstamp(63)
        e(f's_lshl_b32 {sT0}, s2, 2\ns_add_u32 {sT0}, {sT0}, {sW}\ns_lshl_b32 {sT0}, {sT0}, 8\ns_add_u32 {sT0}, {sT0}, {WS_DBG}')
        e(f'v_lshlrev_b32 {vT0}, 2, {vL}')
        e(f'buffer_store_dword {vSTAMP}, {vT0}, {srd(WS)}, {sT0} offen')
    e('s_endpgm')
    e.raw('L_end:')

prologue()
for l in range(2):
    phase1(l); phase2(l); phase3(l); phase4(l)
assert not e.side
epilogue()

hdr = open('interleave_layers__sliding_local_dilated__mixer_token_mlp__prompt.s.ref').read().split('; Override')[0]
desc = f""".section .rodata,"a"
.p2align 6
.amdhsa_kernel {NAME}
  .amdhsa_next_free_vgpr 512
  .amdhsa_next_free_sgpr 102
  .amdhsa_accum_offset 256
  .amdhsa_group_segment_fixed_size 0
  .amdhsa_kernarg_size 88
  .amdhsa_user_sgpr_count 2
  .amdhsa_user_sgpr_kernarg_segment_ptr 1
  .amdhsa_system_sgpr_workgroup_id_x 1
.end_amdhsa_kernel
"""
open(OUT, 'w').write(hdr + f'; @launch grid=(256,1,1) block=(256,1,1) lds={LDS_BYTES}\n.amdgcn_target "amdgcn-amd-amdhsa--gfx950"\n.text\n' + e.text() + desc)
print('instructions', e.ninstr, 'stamps', nstamp[0])
```

```python
import sys, struct, math
sys.path.insert(0, 'gen')
from emit import Emitter

NAME = 'interleave_layers__sliding_local_dilated__mixer_token_mlp__prompt_kernel'
OUT = [a for a in sys.argv[1:] if not a.startswith('--')][0]
EXP = {}
for a_ in sys.argv[1:]:
    if a_.startswith('--'):
        k_, _, v_ = a_[2:].partition('=')
        EXP[k_] = int(v_) if v_ else 1
STAMPS = 'stamps' in EXP
def P(name, default): return EXP.get(name, default)

def f2u(x): return struct.unpack('<I', struct.pack('<f', x))[0]
def hx(x): return '0x%08x' % (x & 0xffffffff)

WS_FLAG = lambda l, ph: 0x10000 * (1 + l * 4 + ph)
WS_STAT = lambda l: 0x100000 + l * 0x40000
WS_O = lambda l: 0x200000 + l * 0x200000
WS_H2 = lambda l: 0x600000 + l * 0x200000
WS_U = lambda l: 0xA00000 + l * 0x200000
WS_X2 = 0xE00000
WS_XH = 0x1000000
WS_FH = 0x90000
WS_FS = lambda l: 0xB0000 + l * 0x8000
WS_PS = 0x180000
WS_XCC = 0xA0000
WS_DBG = 0x2000000
FSTR = 128

SLOT = 4096
NSLOT = 36
SC = NSLOT * SLOT
LDS_BYTES = SC + 16384
assert LDS_BYTES == 163840
HALO = SC
XS = 24 * SLOT
P1S = 32 * SLOT
VT = P1S
KX = P1S + 9216
CSX = P1S + 9216 + 5120
NWE = 8

X0, WQKV, WO, W1, W2, B1, B2, OUTS, WS = 4, 8, 12, 16, 20, 24, 28, 32, 36
def srd(n): return f's[{n}:{n+3}]'
sTAG, sW, sX, sI, sM0 = 's40', 's41', 's42', 's43', 's44'
sTB, sP, sSB, sDT, sDT3, sFT, sKH, sMH = 's45', 's46', 's47', 's48', 's49', 's50', 's51', 's52'
sBQKV, sBWO, sBW1, sBW2 = 's53', 's54', 's55', 's56'
sROT = 's57'
sT0, sT1, sT2, sT3, sT4 = 's60', 's61', 's62', 's63', 's3'
sPAR, sCUR0, sCUR1 = 's[64:65]', 's[66:67]', 's[68:69]'
sWT, sOB, sFSB = 's76', 's77', 's78'
sCNT = 's70'
sC1 = 's71'
sXA, sXB, sXH, sFAST = 's72', 's73', 's74', 's100'
sXM = 's101'
sKQ = [f's{84+i}' for i in range(8)]
sKX = [f's{92+i}' for i in range(8)]

vL, vG, vJ, vL16, vXR = 'v1', 'v2', 'v3', 'v4', 'v5'
vDQ, vDO, vD1, vD2 = 'v6', 'v7', 'v8', 'v9'
vA = list(range(10, 22))
vT0, vT1, vT2, vT3 = 'v22', 'v23', 'v24', 'v25'
vTAG = 'v26'
vL8 = 'v27'
ONES = 28
CARRY = 32
SELP0, SELP1, SELC0, SELC1 = 'v40', 'v41', 'v42', 'v43'
NEG = 44
BIAS = 48
XB = 136
CS = 232
vB = list(range(56, 62))
vP0, vP1 = 'v62', 'v63'
vSTAMP = 'v0'

e = Emitter()
def v(n, w=1): return f'v{n}' if w == 1 else f'v[{n}:{n+w-1}]'
def a(n, w=1): return f'a{n}' if w == 1 else f'a[{n}:{n+w-1}]'

nstamp = [0]
def stamp():
    if not STAMPS: return
    au = e.auto; e.auto = 0
    e(f's_memrealtime s[58:59]\ns_waitcnt lgkmcnt(0)\nv_writelane_b32 {vSTAMP}, s58, {nstamp[0]}')
    e.auto = au
    nstamp[0] += 1
def cstamp(idx):
    if not STAMPS: return
    e(f's_memtime s[58:59]\ns_waitcnt lgkmcnt(0)\nv_writelane_b32 {vSTAMP}, s58, {idx}')

def dma(kind, idx, slot, tag):
    if kind == 'qkv':
        kk, seg = divmod(idx, 3)
        off, base, vo, s = seg * 1024, sKQ[kk], vDQ, WQKV
    elif kind == 'wo':
        off, base, vo, s = idx * 32 * 1024, sBWO, vDO, WO
    elif kind == 'w1':
        off, base, vo, s = idx * 32 * 3584, sBW1, vD1, W1
    elif kind == 'w2':
        off, base, vo, s = idx * 32 * 4096, sBW2, vD2, W2
    e(f's_add_u32 m0, {sM0}, {slot * SLOT}')
    e(f's_add_u32 {sT3}, {base}, {off}')
    e(f'buffer_load_dwordx4 {vo}, {srd(s)}, {sT3} offen lds', tag)

def wo_slot(p): return 24 + p if p < 12 else p - 12
NT = {'w1': 32, 'w2': 28}
def pair_of(kind, t):
    if kind == 'w1':
        if t < 18: return (t + 16) % 18
        return 2 + (t - 18)
    return t if t < 18 else 8 + (t - 18)
def areg_of(kind, t):
    if kind == 'w1': return (48 + 16 * (t - 18)) % 256
    return 16 * (t - 18)

def q_dma(kind, idx, slot): e.side.append(lambda: dma(kind, idx, slot, 'pf'))
def q_big(kind, t0, t1):
    for t in range(t0, t1):
        for kh in (0, 1): q_dma(kind, kh * NT[kind] + t, pair_of(kind, t) * 2 + kh)

def big_tr(dst, pair, u, sg, h):
    st = pair // 6
    return f'ds_read_b64_tr_b16 {dst}, v{vB[st*2+sg]} offset:{(pair - st*6)*2*SLOT + u*2048 + h*1024}'
def preread(kind, t0, t1):
    for t in range(t0, t1):
        for u in (0, 1):
            for sg in (0, 1):
                for h in (0, 1):
                    e(big_tr(a(areg_of(kind, t) + (u*2+sg)*4 + 2*h, 2), pair_of(kind, t), u, sg, h), 'pre')

def hstore(text, tag, local):
    if not local or not P('fast', 1):
        e(text + ' sc1', tag); return
    au = e.auto; e.auto = 0
    Lf, Lj = e.label('hs_f'), e.label('hs_j')
    e(f's_cmp_lg_u32 {sFAST}, 0\ns_cbranch_scc1 {Lf}')
    e(text + ' sc1', tag)
    e(f's_branch {Lj}\n{Lf}:')
    e(text, tag); e.vm.pop()
    e(f'{Lj}:')
    e.auto = au

def put_flag(flag_base, idx_code, local):
    L = e.label('pub')
    e(f's_cmp_lg_u32 {sW}, 0\ns_cbranch_scc1 {L}')
    e(idx_code)
    e(f's_mul_i32 {sT0}, {sT0}, {FSTR}\ns_add_u32 {sT0}, {sT0}, {flag_base}')
    e(f'v_mov_b32 {vP0}, 0\ns_mov_b64 exec, 1')
    hstore(f'buffer_store_dword {vTAG}, {vP0}, {srd(WS)}, {sT0} offen', 'flag', local); e.vm.pop()
    e('s_mov_b64 exec, -1')
    e(f'{L}:')

def publish(flag_base, idx_code, local=False):
    e('s_waitcnt vmcnt(0)\ns_barrier')
    put_flag(flag_base, idx_code, local)

def poll(flag_base, first_code, count):
    L = e.label('poll'); Ld = L + '_d'
    e(f's_cmp_lg_u32 {sW}, 0\ns_cbranch_scc1 {Ld}')
    e(first_code)
    e(f's_mul_i32 {sT0}, {sT0}, {FSTR}\ns_add_u32 {sT0}, {sT0}, {flag_base}')
    e(f'v_min_u32 {vP0}, {count - 1}, {vL}')
    e(f'v_mul_u32_u24 {vP0}, {FSTR}, {vP0}')
    e(f's_mov_b32 {sCNT}, 30000')
    e(f'{L}:')
    e(f'buffer_load_dword {vP1}, {vP0}, {srd(WS)}, {sT0} offen sc1', 'poll')
    e('s_waitcnt vmcnt(0)')
    e(f'v_cmp_ne_u32 vcc, {vP1}, {vTAG}')
    e(f's_cbranch_vccz {Ld}')
    e(f's_sub_u32 {sCNT}, {sCNT}, 1\ns_cmp_lg_u32 {sCNT}, 0\ns_cbranch_scc1 {L}')
    e(f'{Ld}:')
    e('s_waitcnt vmcnt(0) lgkmcnt(0)\ns_barrier')

def prologue():
    e.raw(f'.globl {NAME}\n.p2align 8\n.type {NAME},@function\n{NAME}:')
    e(f's_cmp_lt_u32 s2, 256\ns_cbranch_scc1 L_go\ns_endpgm\nL_go:')
    e(f'v_lshrrev_b32 {vT0}, 6, v0\nv_and_b32 {vL}, 63, v0')
    e(f'v_readfirstlane_b32 {sW}, {vT0}')
    e(f's_getreg_b32 {sXM}, hwreg(HW_REG_XCC_ID)\ns_getreg_b32 {sT0}, hwreg(HW_REG_HW_ID)\ns_and_b32 {sXM}, {sXM}, 15\ns_and_b32 {sX}, {sXM}, 7')
    e(f's_lshr_b32 {sI}, {sT0}, 8\ns_and_b32 {sI}, {sI}, 7\ns_lshr_b32 {sT0}, {sT0}, 10\ns_and_b32 {sT0}, {sT0}, 24\ns_or_b32 {sI}, {sI}, {sT0}\ns_mov_b32 {sFAST}, 1')
    if not P('hwrole', 1): e(f's_and_b32 {sX}, s2, 7\ns_lshr_b32 {sI}, s2, 3\ns_mov_b32 {sFAST}, 0')
    if P('badrole', 0): e(f's_and_b32 {sI}, {sI}, 30')
    e('L_restart:')
    e('s_load_dwordx16 s[64:79], s[0:1], 0\ns_load_dwordx2 s[80:81], s[0:1], 64\ns_load_dwordx2 s[82:83], s[0:1], 80')
    e(f'v_lshrrev_b32 {vG}, 4, {vL}\nv_and_b32 {vJ}, 15, {vL}\nv_lshlrev_b32 {vL16}, 4, {vL}\nv_lshlrev_b32 {vL8}, 3, {vL}')
    e(f's_lshl_b32 {sM0}, {sW}, 10')
    e(f's_lshr_b32 {sT0}, {sI}, 4\ns_lshl_b32 {sTB}, {sX}, 1\ns_add_u32 {sTB}, {sTB}, {sT0}\ns_and_b32 {sP}, {sI}, 15')
    e(f's_lshl_b32 {sBQKV}, {sP}, 6')
    e(f's_add_u32 {sROT}, {sP}, {sTB}' if P('rot', 1) else f's_mov_b32 {sROT}, 0')
    for i in range(8):
        e(f's_add_u32 {sKX[i]}, {sROT}, {i}\ns_and_b32 {sKX[i]}, {sKX[i]}, 7\ns_mul_i32 {sKQ[i]}, {sKX[i]}, {64*3072}\ns_add_u32 {sKQ[i]}, {sKQ[i]}, {sBQKV}')
    e(f'v_lshrrev_b32 {vT0}, 2, {vL}\ns_lshl_b32 {sT0}, {sW}, 4\nv_add_u32 {vT0}, {sT0}, {vT0}\nv_mul_u32_u24 {vDQ}, 3072, {vT0}')
    e(f'v_lshrrev_b32 {vT0}, 5, {vL}\nv_lshlrev_b32 {vT0}, 1, {vT0}\nv_and_b32 {vT1}, 3, {vL}\nv_xor_b32 {vT0}, {vT0}, {vT1}\nv_lshl_add_u32 {vDQ}, {vT0}, 4, {vDQ}')
    e(f'v_lshrrev_b32 {vT0}, 3, {vL}\nv_and_b32 {vT1}, 7, {vL}\nv_xor_b32 {vT1}, {vT1}, {vT0}\nv_lshlrev_b32 {vT1}, 4, {vT1}\nv_lshl_add_u32 {vXR}, {vT0}, 10, {vT1}')
    if STAMPS: e(f'v_mov_b32 {vSTAMP}, 0')
    code_prefetch()
    e('s_waitcnt lgkmcnt(0)')
    e(f's_load_dword {sTAG}, s[82:83], 0')
    for n, src, size in ((X0, 64, 2097152), (WQKV, 66, 1572864), (WO, 68, 524288), (W1, 72, 7340032), (B1, 74, 3584),
                         (W2, 76, 7340032), (B2, 78, 4096), (OUTS, 80, 2097152), (WS, 82, 0x10000000)):
        e(f's_mov_b32 s{n}, s{src}\ns_and_b32 s{n+1}, s{src+1}, 0xffff\ns_mov_b32 s{n+2}, {size}\ns_mov_b32 s{n+3}, 0x20000')

def code_prefetch():
    if not P('cpf', 1): return
    e(f's_getpc_b64 s[58:59]')
    e.raw('L_pc:')
    e(f's_sub_u32 s58, s58, L_pc-{NAME}\ns_subb_u32 s59, s59, 0')
    e(f's_lshl_b32 {sT0}, {sI}, 2\ns_add_u32 {sT0}, {sT0}, {sW}\ns_lshl_b32 {sT0}, {sT0}, 9')
    e(f'v_lshlrev_b32 {vT0}, 7, {vL}\nv_add_u32 {vT0}, {sT0}, {vT0}\nv_min_u32 {vT0}, L_end-{NAME}-4, {vT0}')
    e(f's_mov_b64 exec, 15\nglobal_load_dword a253, {vT0}, s[58:59]\ns_mov_b64 exec, -1', 'pf')

def late_setup():
    e(f's_lshr_b32 {sT0}, {sI}, 3\ns_lshl_b32 {sSB}, {sX}, 2\ns_add_u32 {sSB}, {sSB}, {sT0}\ns_and_b32 {sDT}, {sI}, 7')
    e(f's_and_b32 {sT0}, {sX}, 1\ns_lshl_b32 {sT0}, {sT0}, 2\ns_and_b32 {sDT3}, {sI}, 3\ns_add_u32 {sDT3}, {sDT3}, {sT0}')
    e(f's_lshr_b32 {sT0}, {sX}, 1\ns_mul_i32 {sT0}, {sT0}, 7\ns_lshr_b32 {sFT}, {sI}, 2\ns_add_u32 {sFT}, {sFT}, {sT0}')
    e(f's_min_u32 {sFT}, {sFT}, 27')
    e(f's_lshr_b32 {sKH}, {sW}, 1\ns_and_b32 {sMH}, {sW}, 1')
    e(f's_lshl_b32 {sBWO}, {sDT}, 7\ns_lshl_b32 {sBW1}, {sFT}, 7\ns_lshl_b32 {sBW2}, {sSB}, 7')
    e(f'v_lshrrev_b32 {vT0}, 3, {vL}\ns_lshl_b32 {sT0}, {sW}, 3\nv_add_u32 {vT0}, {sT0}, {vT0}')
    e(f'v_and_b32 {vT1}, 7, {vL}\nv_lshlrev_b32 {vT2}, 1, {vG}\nv_xor_b32 {vT1}, {vT1}, {vT2}\nv_lshlrev_b32 {vT1}, 4, {vT1}')
    e(f'v_lshl_add_u32 {vDO}, {vT0}, 10, {vT1}')
    e(f'v_and_b32 {vT1}, 7, {vL}\nv_and_b32 {vT2}, 1, {vG}\nv_lshlrev_b32 {vT2}, 2, {vT2}\nv_xor_b32 {vT1}, {vT1}, {vT2}\nv_lshlrev_b32 {vT1}, 4, {vT1}')
    e(f'v_lshl_add_u32 {vD2}, {vT0}, 12, {vT1}')
    e(f'v_mul_u32_u24 {vD1}, 3584, {vT0}\nv_add_u32 {vD1}, {vD1}, {vT1}')
    for i in range(4): e(f'v_mov_b32 {v(ONES + i)}, 0x3f803f80')
    e('s_waitcnt lgkmcnt(0)')
    e(f's_mul_i32 {sTAG}, {sTAG}, 1664525\ns_add_u32 {sTAG}, {sTAG}, 1013904223')
    e(f's_mul_i32 {sT0}, {sFAST}, 0x5bd1e995\ns_xor_b32 {sTAG}, {sTAG}, {sT0}')
    e(f'v_mov_b32 {vTAG}, {sTAG}')
    Lx = e.label('xcc')
    au = e.auto; e.auto = 0
    e(f's_lshr_b32 {sT0}, {sXM}, 3\ns_or_b32 {sT0}, {sT0}, {sW}\ns_cmp_lg_u32 {sT0}, 0\ns_cbranch_scc1 {Lx}')
    e(f'v_mov_b32 {vT1}, {sTAG}\ns_lshl_b32 {sT0}, {sX}, 7\ns_lshl_b32 {sT1}, {sI}, 2\ns_add_u32 {sT0}, {sT0}, {sT1}\ns_add_u32 {sT0}, {sT0}, {WS_XCC}')
    e(f'v_mov_b32 {vT0}, 0\ns_mov_b64 exec, 1')
    e(f'buffer_store_dword {vT1}, {vT0}, {srd(WS)}, {sT0} offen sc1', None); e.vm.pop()
    e(f's_mov_b64 exec, -1\n{Lx}:')
    e.auto = au
    e(f'v_lshrrev_b32 {vT0}, 5, {vL}\nv_lshlrev_b32 {vT0}, 2, {vT0}\nv_lshrrev_b32 {vT1}, 2, {vL}\nv_and_b32 {vT1}, 3, {vT1}\nv_add_u32 {vT0}, {vT0}, {vT1}\nv_lshlrev_b32 {vT0}, 7, {vT0}')
    e(f'v_lshrrev_b32 {vT1}, 1, {vT1}\nv_lshl_add_u32 {vT0}, {vT1}, 6, {vT0}\nv_and_b32 {vT1}, 1, {vG}\nv_lshl_add_u32 {vT0}, {vT1}, 5, {vT0}\nv_and_b32 {vT1}, 3, {vL}\nv_lshl_add_u32 {vT0}, {vT1}, 3, {vT0}')
    e(f's_lshl_b32 {sT0}, {sKH}, 6\nv_xor_b32 {vT0}, {sT0}, {vT0}\ns_lshl_b32 {sT0}, {sKH}, 12\nv_add_u32 v{vB[0]}, {sT0}, {vT0}\nv_xor_b32 v{vB[1]}, 64, v{vB[0]}')
    for st in (1, 2):
        for sg in (0, 1): e(f'v_add_u32 v{vB[st*2+sg]}, {st*12*SLOT}, v{vB[sg]}')
    e(f'v_and_b32 {vT0}, 1, {vJ}\nv_cmp_eq_u32 {sPAR}, 1, {vT0}')
    e(f'v_lshl_add_u32 {vT1}, {vG}, 2, {vT0}')
    e(f'v_cmp_le_u32 {sCUR0}, {vT1}, {vJ}\nv_add_u32 {vT1}, 2, {vT1}\nv_cmp_le_u32 {sCUR1}, {vT1}, {vJ}')
    e(f's_lshl_b32 {sWT}, {sI}, 2\ns_add_u32 {sWT}, {sWT}, {sW}\ns_lshr_b32 {sT0}, {sWT}, 6\ns_and_b32 {sWT}, {sWT}, 63\ns_mul_i32 {sWT}, {sWT}, {(16 // P("ntouch", 8))*3584}')
    e(f's_mul_i32 {sT0}, {sT0}, {1024*3584}\ns_add_u32 {sWT}, {sWT}, {sT0}\ns_lshr_b32 {sT0}, {sX}, 1\ns_mul_i32 {sT0}, {sT0}, 896\ns_add_u32 {sWT}, {sWT}, {sT0}')
    e(f's_lshl_b32 {sOB}, {sTB}, 3\ns_lshl_b32 {sT0}, {sW}, 1\ns_add_u32 {sOB}, {sOB}, {sT0}\ns_lshl_b32 {sOB}, {sOB}, 4\ns_add_u32 {sOB}, {sOB}, {sP}\ns_lshl_b32 {sOB}, {sOB}, 10')
    e(f'v_mov_b32 {vT2}, 0x0c0c0c0c')
    for u, (sc, sp, cur) in enumerate(((SELC0, SELP0, sCUR0), (SELC1, SELP1, sCUR1))):
        lo = 0x0c0c0000 | ((2*u+1) << 8) | (2*u)
        hi = ((2*u+1) << 24) | ((2*u) << 16) | 0x0c0c
        e(f'v_mov_b32 {vT0}, {hx(lo)}\nv_mov_b32 {vT1}, {hx(hi)}\nv_cndmask_b32 {vT0}, {vT0}, {vT1}, {sPAR}')
        e(f'v_cndmask_b32 {sc}, {vT2}, {vT0}, {cur}\nv_cndmask_b32 {sp}, {vT0}, {vT2}, {cur}')
    e(f's_or_b32 {sT0}, {sTB}, {sW}\ns_cmp_eq_u32 {sT0}, 0\ns_cselect_b32 {sT0}, {hx(f2u(-1e30))}, 0')
    for i in range(4): e(f'v_mov_b32 {v(NEG + i)}, {sT0}')

XF = 136
ACC1 = 64
def acc1(t, c): return ACC1 + (t * 6 + c) * 4
HA, HB = 112, 116
FSR = 120
PSR = 132

def p1_tr(dst, kt, seg, h, avs):
    slot = (kt >> 1) * 3 + seg
    st = slot // 12
    imm = (slot - st * 12) * SLOT + (kt & 1) * 2048 + h * 256
    return f'ds_read_b64_tr_b16 {dst}, v{avs[st]} offset:{imm}'

def ln_stats(vs, vq, vr, vn, t0, double=False):
    e(f'v_mul_f32 {vs}, {hx(f2u(1/512))}, {vs}')
    e(f'v_mul_f32 {vq}, {hx(f2u(1/512))}, {vq}')
    e(f'v_fma_f32 {vq}, -{vs}, {vs}, {vq}')
    e(f'v_max_f32 {vq}, 0, {vq}')
    e(f'v_add_f32 v{t0}, {hx(f2u(1e-5))}, {vq}')
    e(f'v_rsq_f32 {vr}, v{t0}')
    if double:
        e(f'v_mul_f32 v{t0}, {vr}, {vr}')
        e(f'v_mul_f32 v{t0}, v{t0}, {vq}')
        e(f'v_add_f32 v{t0}, {hx(f2u(1e-5))}, v{t0}')
        e(f'v_rsq_f32 v{t0}, v{t0}')
        e(f'v_mul_f32 {vr}, {vr}, v{t0}')
    e(f'v_mul_f32 {vn}, {vs}, {vr}')
    e(f'v_sub_f32 {vn}, 0, {vn}')

def warm_touch():
    NTCH = P('ntouch', 8)
    rows = 16 // NTCH
    def w1t(q):
        blk = NTCH - 1 - q
        e(f's_add_u32 {sT4}, {sWT}, {blk*(1024//NTCH)*3584}')
        if rows < 8: e(f's_mov_b64 exec, {hx((1 << (8*rows)) - 1) if rows < 4 else "0xffffffff"}' if rows < 4 else 's_mov_b32 exec_hi, 0')
        e(f'buffer_load_dword a250, v{vA[10]}, {srd(W1)}, {sT4} offen', 'pf')
        if rows < 8: e('s_mov_b64 exec, -1')
    return [lambda q=q: w1t(q) for q in range(NTCH)]

def spin_check(tag, loads, bad_code, limit=30000):
    L = e.label('chk'); Ld = L + '_d'
    e.wait_vm(tag)
    e(f's_mov_b32 {sCNT}, {limit}')
    e(f'{L}:')
    e(bad_code)
    e(f's_cbranch_vccz {Ld}')
    for ld in loads:
        e(ld, None); e.vm.pop()
    e(f's_waitcnt vmcnt(0)\ns_sub_u32 {sCNT}, {sCNT}, 1\ns_cmp_lg_u32 {sCNT}, 0\ns_cbranch_scc1 {L}')
    e(f'{Ld}:')

def phase1(l):
    first = l == 0
    def addr_setup():
        e(f'v_lshrrev_b32 {vT0}, 2, {vL}\nv_and_b32 {vT0}, 3, {vT0}\nv_lshl_add_u32 {vT0}, {vG}, 3, {vT0}\nv_lshlrev_b32 {vT0}, 6, {vT0}')
        e(f'v_and_b32 {vT1}, 3, {vL}\nv_lshl_add_u32 {vT0}, {vT1}, 3, {vT0}')
        e(f'v_and_b32 {vT1}, 1, {vG}\nv_lshl_add_u32 v{vA[0]}, {vT1}, 5, {vT0}')
        e(f'v_add_u32 v{vA[1]}, {12*SLOT}, v{vA[0]}')
        e(f'v_xor_b32 v{vA[2]}, 32, v{vA[0]}\nv_xor_b32 v{vA[3]}, 32, v{vA[1]}')
        e(f'v_lshrrev_b32 {vT0}, 3, {vL}\nv_mul_u32_u24 {vT2}, 3584, {vT0}\nv_and_b32 {vT1}, 7, {vL}\nv_min_u32 v{vA[10]}, 6, {vT1}\nv_lshl_add_u32 v{vA[10]}, v{vA[10]}, 7, {vT2}')
        e(f'v_lshlrev_b32 {vT0}, 14, {vT0}\nv_lshl_add_u32 v{vA[11]}, {vT1}, 7, {vT0}')
        e(f's_lshl_b32 {sT0}, {sMH}, 5\nv_xor_b32 {vT2}, {sT0}, v{vA[0]}\nv_xor_b32 {vT3}, {sT0}, v{vA[1]}')
        e(f's_lshl_b32 {sT0}, {sKH}, 12\ns_add_u32 {sT0}, {sT0}, {SLOT}\nv_add_u32 v{vA[4]}, {sT0}, {vT2}\nv_add_u32 v{vA[5]}, {sT0}, {vT3}')
        if first:
            e(f'v_and_b32 {vT0}, 7, {vJ}\nv_xor_b32 {vT0}, {vT0}, {vG}\nv_lshlrev_b32 {vT0}, 4, {vT0}\nv_lshl_add_u32 {vT0}, {vJ}, 7, {vT0}')
            e(f'v_add_u32 v{vA[6]}, {sXB}, {vT0}\nv_xor_b32 v{vA[7]}, 64, v{vA[6]}')
            e(f'v_add_u32 v{vA[8]}, {HALO}, {vT0}\nv_xor_b32 v{vA[9]}, 64, v{vA[8]}')
            e(f'v_lshrrev_b32 {vT0}, 3, {vL}\nv_lshlrev_b32 {vT0}, 11, {vT0}\nv_and_b32 {vT1}, 7, {vL}\nv_lshl_add_u32 {vT0}, {vT1}, 4, {vT0}\nv_add_u32 {vT0}, {HALO}, {vT0}')
        else:
            e(f'v_add_u32 v{vA[8]}, {HALO}, {vL16}\nv_add_u32 v{vA[9]}, 1024, v{vA[8]}')
            e(f's_lshl_b32 {sT0}, {sW}, 12\nv_add_u32 {vT3}, {sT0}, v{vA[8]}')
            e(f'v_lshlrev_b32 v{vA[6]}, 4, {vJ}')
            e(f'v_lshlrev_b32 {vT0}, 8, {vL}\nv_add_u32 {vT0}, {HALO}, {vT0}')
        e(f'ds_write_b128 {vT0}, {v(ONES, 4)}', 'ones')
    def bases():
        e(f's_lshl_b32 {sXA}, {sTB}, 3\ns_lshl_b32 {sT1}, {sW}, 1\ns_add_u32 {sXA}, {sXA}, {sT1}\ns_lshl_b32 {sXA}, {sXA}, 14')
        e(f's_lshl_b32 {sFSB}, {sTB}, 4\ns_add_u32 {sFSB}, {sFSB}, {sP}\ns_lshl_b32 {sFSB}, {sFSB}, 3\ns_add_u32 {sFSB}, {sFSB}, {sT1}')
        if first:
            e(f's_lshl_b32 {sXH}, {sTB}, 3\ns_sub_u32 {sXH}, {sXH}, 1\ns_max_i32 {sXH}, {sXH}, 0\ns_lshl_b32 {sXH}, {sXH}, 14')
            e(f's_mul_i32 {sXB}, {sW}, {3*SLOT}\ns_add_u32 {sXB}, {sXB}, {XS}')
        else:
            e(f's_add_u32 {sXA}, {sXA}, {WS_X2}')
            e(f's_lshl_b32 {sXH}, {sTB}, 14\ns_add_u32 {sXH}, {sXH}, {WS_XH}\ns_cmp_eq_u32 {sTB}, 0\ns_cselect_b32 {sXH}, {WS_X2}, {sXH}')
    if not first:
        addr_setup(); bases()
        e.drain()
        e(f's_lshl_b32 {sT4}, {sFSB}, 7\ns_add_u32 {sT4}, {sT4}, {WS_PS}')
        poll(WS_FLAG(0, 3), f's_lshl_b32 {sT0}, {sTB}, 4', 16)
    stamp()
    if first: cstamp(62); bases()

    def fs_store(R, lanes, shift):
        e(f'v_mov_b32 v{R+1}, {vTAG}\nv_mov_b32 v{R+3}, {vTAG}\nv_lshrrev_b32 {vT1}, {shift}, {vL}\nv_lshlrev_b32 {vT1}, 4, {vT1}')
        e(f's_lshl_b32 {sT4}, {sFSB}, 4\ns_add_u32 {sT4}, {sT4}, {WS_FS(l)}')
        e(lanes)
        e(f'buffer_store_dwordx4 {v(R, 4)}, {vT1}, {srd(WS)}, {sT4} offen sc1', 'fst')
        e('s_mov_b64 exec, -1')

    sched = {}
    if first:
        def xdma(kk, i):
            e(f's_lshl_b32 {sT3}, {sKX[kk]}, 7\ns_add_u32 {sT3}, {sT3}, {sXA}')
            if i: e(f's_add_u32 {sT3}, {sT3}, {8192*i}')
            e(f's_add_u32 m0, {sXB}, {(kk % 3)*SLOT + i*1024}')
            e(f'buffer_load_dwordx4 {vXR}, {srd(X0)}, {sT3} offen lds', ('x', kk))
        def frag(t, kt): return XB + (kt & 1) * 8 + 4 * t
        def halo_dma(n):
            kkl, i = n >> 1, n & 1
            e(f's_lshl_b32 {sT4}, {sW}, 1\ns_add_u32 {sT4}, {sT4}, {sROT}\ns_add_u32 {sT4}, {sT4}, {kkl}\ns_and_b32 {sT4}, {sT4}, 7\ns_lshl_b32 {sT4}, {sT4}, 7')
            e(f's_add_u32 {sT4}, {sT4}, {sXH}\ns_add_u32 {sT4}, {sT4}, {8192*i}')
            e(f's_lshl_b32 {sT3}, {sW}, 12\ns_add_u32 m0, {sT3}, {HALO + kkl*2048 + i*1024}')
            if i == 0: e('s_mov_b32 exec_lo, 0xffffff00')
            e(f'buffer_load_dwordx4 {vXR}, {srd(X0)}, {sT4} offen lds', 'halo')
            if i == 0: e('s_mov_b32 exec_lo, -1')
        RW = 160
        e(f's_lshl_b32 {sT4}, {sFSB}, 10')
        for i in range(2): e(f'buffer_load_dwordx4 {v(RW + 4*i, 4)}, {vL16}, {srd(X0)}, {sT4} offen offset:{1024*i}', 'rw')
        seq = []
        for kk in range(3):
            seq += [lambda kk=kk, i=i: xdma(kk, i) for i in range(4)]
            seq += [lambda kk=kk, seg=seg: dma('qkv', kk*3+seg, kk*3+seg, ('qkv', kk)) for seg in range(3)]
        wq = [lambda kk=kk, seg=seg: dma('qkv', kk*3+seg, kk*3+seg, ('qkv', kk)) for kk in range(3, 8) for seg in range(3)]
        seq += wq[:6] + [lambda n=n: halo_dma(n) for n in range(4)] + wq[6:]
        n0, n1 = P('b0', 9), P('b1', 21)
        for f in seq[:n0]: f()
        e.side = seq[n0:n1]
        e.auto = P('auto0', 12)
        late_setup()
        addr_setup()
        e.wait_vm('rw')
        A_ = 168
        for r in range(4):
            for i in range(2):
                x = f'v{RW + 4*i + r}'
                e(f'v_dot2_f32_bf16 v{A_+i}, {x}, {v(ONES)}, {"0" if r == 0 else f"v{A_+i}"}')
                e(f'v_dot2_f32_bf16 v{A_+2+i}, {x}, {x}, {"0" if r == 0 else f"v{A_+2+i}"}')
        e(f'v_permlane32_swap_b32 v{A_}, v{A_+1}\nv_permlane32_swap_b32 v{A_+2}, v{A_+3}')
        e(f'v_add_f32 v{A_}, v{A_}, v{A_+1}\nv_add_f32 v{A_+2}, v{A_+2}, v{A_+3}')
        e(f'v_permlane16_swap_b32 v{A_}, v{A_+2}\nv_add_f32 v{A_}, v{A_}, v{A_+2}')
        for sh in (8, 4, 2, 1): e(f'v_add_f32_dpp v{A_}, v{A_}, v{A_} row_ror:{sh} row_mask:0xf bank_mask:0xf')
        e(f'v_mov_b32 v{A_+1}, v{A_}\nv_permlane16_swap_b32 v{A_}, v{A_+1}')
        ln_stats(f'v{A_}', f'v{A_+1}', f'v{A_+4}', f'v{A_+6}', A_+2)
        e.auto = 0
        fs_store(A_+4, 's_mov_b32 exec_lo, 1\ns_mov_b32 exec_hi, 1', 5)
        e.drain()
        if 'p1st' in EXP: stamp()
        for kk in range(3, 8):
            sched.setdefault(2*(kk-3)+1, []).extend([lambda kk=kk, i=i: xdma(kk, i) for i in (0, 1)])
            sched.setdefault(2*(kk-3)+2, []).extend([lambda kk=kk, i=i: xdma(kk, i) for i in (2, 3)])
        loads = seq[n1:]
        def res_load(ct):
            if ct == 0:
                e(f's_lshl_b32 {sT2}, {sSB}, 2\ns_add_u32 {sT2}, {sT2}, {sW}\ns_lshl_b32 {sT2}, {sT2}, 14\ns_add_u32 {sT2}, {sT2}, {sBWO}')
                e(f'v_lshlrev_b32 {vT0}, 10, {vJ}\nv_lshl_add_u32 {vT0}, {vG}, 3, {vT0}')
            e(f'buffer_load_dwordx2 {v(CARRY + 2*ct, 2)}, {vT0}, {srd(X0)}, {sT2} offen offset:{ct*32}', 'res')
        XQ = 176
        xl = f'buffer_load_dwordx4 {v(XQ, 4)}, {vL16}, {srd(WS)}, {sT1} offen sc1'
        def xcc_load():
            e(f's_mov_b32 {sT1}, {WS_XCC}')
            e(xl, 'xcc')
        def xcc_check():
            Lk = e.label('role_ok')
            e(f's_cmp_eq_u32 {sFAST}, 0\ns_cbranch_scc1 {Lk}')
            spin_check('xcc', [xl], f'v_xor_b32 v{XQ}, v{XQ}, {vTAG}\nv_xor_b32 v{XQ+1}, v{XQ+1}, {vTAG}\nv_xor_b32 v{XQ+2}, v{XQ+2}, {vTAG}\nv_xor_b32 v{XQ+3}, v{XQ+3}, {vTAG}\n'
                       f'v_or3_b32 v{XQ}, v{XQ}, v{XQ+1}, v{XQ+2}\nv_or_b32 v{XQ}, v{XQ}, v{XQ+3}\nv_cmp_ne_u32 vcc, 0, v{XQ}', 4000)
            e(f's_cmp_lg_u32 {sCNT}, 0\ns_cbranch_scc1 {Lk}')
            e(f's_waitcnt vmcnt(0) lgkmcnt(0)\ns_barrier\ns_and_b32 {sX}, s2, 7\ns_lshr_b32 {sI}, s2, 3\ns_mov_b32 {sFAST}, 0\ns_nop 7\ns_nop 7\ns_branch L_restart')
            e(f'{Lk}:')
        sched.setdefault(6, []).append(xcc_load)
        sched.setdefault(11, []).append(xcc_check)
        for ct in range(4): sched.setdefault(14 + ct // 2, []).append(lambda ct=ct: res_load(ct))
        ts = P('tstep0', 8)
        per_step = P('ps0', 5)
        hb = P('hb0', 8)
        fsl = P('fsl0', 11)
    else:
        def frag(t, kt): return XF + ((kt % 12) * 2 + t) * 4
        def xload(kt, t):
            if t == 0 and kt % 2 == 0: e(f's_lshl_b32 {sXB}, {sKX[kt >> 1]}, 11\ns_add_u32 {sXB}, {sXB}, {sXA}\ns_add_u32 {sT2}, {sXB}, 16384')
            e(f'buffer_load_dwordx4 {v(frag(t, kt), 4)}, {vL16}, {srd(WS)}, {(sXB, sT2)[t]} offen offset:{(kt & 1)*1024} sc1', ('x', kt))
        hl = f'buffer_load_dword {vP1}, {vP0}, {srd(WS)}, {sT1} offen sc1'
        def hflag_load():
            e(f'v_min_u32 {vP0}, 7, {vL}\nv_mul_u32_u24 {vP0}, {FSTR}, {vP0}')
            e(f's_mul_i32 {sT1}, {sTB}, {8*FSTR}\ns_add_u32 {sT1}, {sT1}, {WS_FH}\ns_cmp_eq_u32 {sTB}, 0\ns_cselect_b32 {sT1}, {WS_FLAG(0, 3)}, {sT1}')
            e(hl, 'hf')
        def halo_load(n):
            if n == 0: spin_check('hf', [hl], f'v_cmp_ne_u32 vcc, {vP1}, {vTAG}')
            if n % 2 == 0:
                e(f's_lshl_b32 {sT4}, {sW}, 1\ns_add_u32 {sT4}, {sT4}, {sROT}\ns_add_u32 {sT4}, {sT4}, {n >> 1}\ns_and_b32 {sT4}, {sT4}, 7\ns_lshl_b32 {sT4}, {sT4}, 11')
                e(f's_add_u32 {sT1}, {sT4}, {sXH}')
            e(f'buffer_load_dwordx4 {a(96 + 4*n, 4)}, {vL16}, {srd(WS)}, {sT1} offen offset:{(n & 1)*1024} sc1', 'halo')
        e(f'buffer_load_dwordx4 {v(PSR, 4)}, v{vA[6]}, {srd(WS)}, {sT4} offen sc1', 'ps')
        loads = [lambda kt=kt, t=t: xload(kt, t) for kt in range(16) for t in (0, 1)]
        lead = P('p1lead1', 4) * 2
        for f in loads[:lead]: f()
        loads = loads[lead:]
        Lh = e.label('hf')
        e(f's_and_b32 {sT0}, {sSB}, 1\ns_cmp_eq_u32 {sT0}, 0\ns_cbranch_scc1 {Lh}')
        put_flag(WS_FH, f's_lshr_b32 {sT0}, {sSB}, 1\ns_add_u32 {sT0}, {sT0}, 1\ns_lshl_b32 {sT0}, {sT0}, 3\ns_add_u32 {sT0}, {sT0}, {sDT}', False)
        e(f'{Lh}:')
        e.wait_vm('ps')
        e(f'v_add_f32 v{PSR}, v{PSR}, v{PSR+2}\nv_add_f32 v{PSR+1}, v{PSR+1}, v{PSR+3}')
        for m_ in ('quad_perm:[1,0,3,2]', 'quad_perm:[2,3,0,1]', 'row_half_mirror'):
            for i in range(2): e(f'v_add_f32_dpp v{PSR+i}, v{PSR+i}, v{PSR+i} {m_} row_mask:0xf bank_mask:0xf')
        ln_stats(f'v{PSR}', f'v{PSR+1}', f'v{FSR}', f'v{FSR+2}', PSR+2)
        fs_store(FSR, 's_mov_b64 exec, 0x101', 3)
        hs0 = P('hstep', 5)
        sched[hs0] = [hflag_load]
        sched[hs0 + 2] = [lambda n=n: halo_load(n) for n in range(4)]
        hb = hs0 + 5
        for p in range(NWE): sched.setdefault(12 + p // 2, []).append(lambda p=p: dma('wo', p, wo_slot(p), 'pf'))
        ts = P('tstep1', 8)
        per_step = 4
        fsl = P('fsl1', 12)
    fl = [f'buffer_load_dwordx4 {v(FSR + 4*i, 4)}, {vP0}, {srd(WS)}, {(sT1, sT1, sFSB)[i]} offen offset:{(0, 256, 0)[i]} sc1' for i in range(3)]
    def fs_loads():
        e(f'v_lshlrev_b32 {vP0}, 4, {vJ}\ns_lshl_b32 {sT1}, {sTB}, 11\ns_sub_u32 {sFSB}, {sT1}, 256\ns_max_i32 {sFSB}, {sFSB}, 0\ns_add_u32 {sFSB}, {sFSB}, {WS_FS(l)}')
        e(f's_lshl_b32 {sT4}, {sW}, 9\ns_add_u32 {sT1}, {sT1}, {sT4}\ns_add_u32 {sT1}, {sT1}, {WS_FS(l)}')
        for f in fl: e(f, 'fs')
    sched.setdefault(fsl, []).append(fs_loads)
    if P('warm', 1):
        for i, f in enumerate(warm_touch()): sched.setdefault(min(15, ts + i), []).append(f)
    if P('pretouch', 1):
        def pt_o():
            e(f's_add_u32 {sT4}, {sOB}, {WS_O(l)}\ns_mov_b64 exec, 0xffff')
            e(f'buffer_load_dword a249, v{vA[11]}, {srd(WS)}, {sT4} offen', 'pf')
            e('s_mov_b64 exec, -1')
        def pt_s():
            e(f's_lshl_b32 {sT4}, {sSB}, 2\ns_add_u32 {sT4}, {sT4}, {sW}\ns_lshl_b32 {sT4}, {sT4}, 3\ns_add_u32 {sT4}, {sT4}, {sDT}\ns_lshl_b32 {sT4}, {sT4}, 8\ns_add_u32 {sT4}, {sT4}, {WS_STAT(l)}')
            e('s_mov_b64 exec, 3')
            e(f'buffer_load_dword a248, v{vA[11]}, {srd(WS)}, {sT4} offen', 'pf')
            e(f's_lshl_b32 {sT4}, {sTB}, 4\ns_add_u32 {sT4}, {sT4}, {sP}\ns_mul_i32 {sT4}, {sT4}, {FSTR}\ns_add_u32 {sT4}, {sT4}, {WS_FLAG(l, 0)}\ns_mov_b64 exec, 1')
            e(f'buffer_load_dword a247, v{vA[11]}, {srd(WS)}, {sT4} offen', 'pf')
            e('s_mov_b64 exec, -1')
        sched.setdefault(ts, []).insert(0, pt_o)
        sched.setdefault(ts + 1, []).insert(0, pt_s)

    NB = 12
    DW = P('p1dw', 4)
    def wreads(ph):
        kt, c = divmod(ph, 6)
        seg, ct = c >> 1, c & 1
        return [p1_tr(a((ph % NB)*4 + 2*h, 2), kt, seg, h, (vA[2*ct], vA[2*ct+1])) for h in (0, 1)]
    def xreads(kt):
        return [f'ds_read_b128 {v(frag(t, kt), 4)}, v{vA[6 + (kt & 1)]} offset:{((kt >> 1) % 3)*SLOT + t*2048}' for t in (0, 1)]
    def hbuf(hk): return 48 + (hk % 4) * 12
    def hreads(hk):
        b = hbuf(hk)
        out = [f'ds_read_b128 {a(b, 4)}, v{vA[8 + (hk & 1)]} offset:{(hk >> 1)*2048}']
        out += [p1_tr(a(b + 4 + 2*h, 2), hk, 0, h, (vA[4], vA[5])) for h in (0, 1)]
        if first: out += [p1_tr(a(b + 8 + 2*h, 2), hk, 0, h, (24, 25)) for h in (0, 1)]
        return out
    def gate(kk):
        if first:
            e.wait_vm(('qkv', kk)); e('s_barrier')
    if first:
        e.wait_vm(('x', 0))
        for r in xreads(0): e(r, ('xf', 0))
    gate(0)
    for ph in range(DW):
        for r in wreads(ph): e(r, ('f', ph))
    slots = list(range(hb * 6, 96))
    hpos = {slots[int(i * len(slots) / 18)]: i for i in range(18)}
    lpos = [int(i * 12 / per_step) for i in range(per_step)]
    for kt in range(16):
        n = 0
        must = sched.pop(kt, [])
        if 'p1st' in EXP and kt % 2 == 0: stamp()
        def slot_ops():
            nonlocal n
            if n in lpos:
                if must: must.pop(0)()
                elif loads: loads.pop(0)()
            n += 1
        if kt == hb:
            e.wait_vm('halo')
            if not first:
                e('s_mov_b32 exec_lo, 0xfffefffe\ns_mov_b32 exec_hi, 0xfffefffe')
                for i in range(4): e(f'ds_write_b128 {vT3}, {a(96 + 4*i, 4)} offset:{1024*i}', 'hw')
                e('s_mov_b64 exec, -1')
                e.wait_lg('hw')
            e('s_barrier')
        if first:
            e.wait_both(('x', (kt+1) >> 1) if kt % 2 == 1 and kt < 15 else None, ('xf', kt))
        else: e.wait_vm(('x', kt))
        for c in range(6):
            ph = kt * 6 + c
            nx = ph + DW
            if nx < 96 and nx % 12 == 0: gate(nx // 12)
            e.wait_lg(('f', ph))
            for t in (0, 1):
                ac = v(acc1(t, c), 4)
                e(f'v_mfma_f32_16x16x32_bf16 {ac}, {a((ph % NB)*4, 4)}, {v(frag(t, kt), 4)}, {"0" if kt == 0 else ac}')
                if nx < 96: e(wreads(nx)[t], ('f', nx))
                if first and kt < 15 and c == 0: e(xreads(kt+1)[t], ('xf', kt+1))
                slot_ops()
            if ph in hpos:
                i = hpos[ph]
                assert not first or i >= 16 or (i >> 1) <= (ph + DW) // 12
                hk = i - 2
                rd = hreads(i) if i < 16 else []
                if hk >= 0:
                    e.wait_lg(('h', hk))
                    b = hbuf(hk)
                    e(f'v_mfma_f32_16x16x32_bf16 {v(HA,4)}, {a(b+4,4)}, {a(b,4)}, {"0" if hk == 0 else v(HA,4)}')
                    for r in rd[:2]: e(r, ('h', i))
                    rd = rd[2:]
                    if first: e(f'v_mfma_f32_16x16x32_bf16 {v(HB,4)}, {a(b+8,4)}, {a(b,4)}, {"0" if hk == 0 else v(HB,4)}')
                for r in rd: e(r, ('h', i))
        while must: must.pop(0)()
    assert not sched
    while loads: loads.pop(0)()
    stamp()
    e(f's_lshl_b32 {sT0}, {sW}, 11\ns_add_u32 {sT0}, {sT0}, {VT}\nv_lshlrev_b32 {vT2}, 6, {vJ}\nv_lshl_add_u32 {vT2}, {vG}, 3, {vT2}\nv_add_u32 {vT0}, {sT0}, {vT2}')
    e(f'v_lshrrev_b32 {vT3}, 2, {vL}\nv_lshlrev_b32 {vT3}, 6, {vT3}\nv_and_b32 {vT1}, 3, {vL}\nv_lshl_add_u32 {vT3}, {vT1}, 3, {vT3}\nv_add_u32 {vT3}, {sT0}, {vT3}')
    e(f's_add_u32 {sT0}, {sM0}, {KX}\nv_add_u32 {vT1}, {sT0}, {vL8}')
    e(f's_lshl_b32 {sT0}, {sMH}, 9\ns_add_u32 {sT0}, {sT0}, {KX}\ns_lshl_b32 {sT2}, {sMH}, 5\ns_add_u32 {sT2}, {sT2}, {VT}')
    e(f's_cmp_lg_u32 {sKH}, 0\ns_cselect_b32 {sT0}, {sT2}, {sT0}\ns_cselect_b64 vcc, -1, 0\nv_cndmask_b32 {vT2}, {vL8}, {vT2}, vcc\nv_add_u32 {vT2}, {sT0}, {vT2}')
    if first:
        e(f's_lshl_b32 {sT0}, {sW}, 6\ns_add_u32 {sT0}, {sT0}, {CSX + 128}\ns_lshl_b32 {sT2}, {sMH}, 6\ns_add_u32 {sT2}, {sT2}, {CSX}')
        e(f'v_lshlrev_b32 v136, 4, {vG}\nv_add_u32 v137, {sT0}, v136\nv_add_u32 v138, {sT2}, v136\nv_add_u32 v136, {CSX}, v136')
        e('s_barrier')
        e('s_mov_b32 exec_lo, 0x00010001\ns_mov_b32 exec_hi, 0x00010001')
        e(f'ds_write_b128 v137, {v(HA,4)}\nds_write_b128 v138, {v(HB,4)}')
        e('s_mov_b64 exec, -1\ns_waitcnt lgkmcnt(0)\ns_barrier')
        for c in range(6): e(f'ds_read_b128 {v(CS + 4*c, 4)}, v136 offset:{64*c}', 'csr')
        for p in range(NWE): q_dma('wo', p, wo_slot(p))
    spin_check('fs', fl, f'v_xor_b32 v{PSR}, v{FSR+1}, {vTAG}\nv_xor_b32 v{PSR+1}, v{FSR+3}, {vTAG}\nv_xor_b32 v{PSR+2}, v{FSR+5}, {vTAG}\nv_xor_b32 v{PSR+3}, v{FSR+7}, {vTAG}\n'
               f'v_or3_b32 v{PSR}, v{PSR}, v{PSR+1}, v{PSR+2}\nv_xor_b32 v{PSR+1}, v{FSR+9}, {vTAG}\nv_xor_b32 v{PSR+2}, v{FSR+11}, {vTAG}\n'
               f'v_or3_b32 v{PSR}, v{PSR}, v{PSR+3}, v{PSR+1}\nv_or_b32 v{PSR}, v{PSR}, v{PSR+2}\nv_cmp_ne_u32 vcc, 0, v{PSR}')
    QP = 176
    KP = 184
    VP = 196
    VW = 208
    def norm(ac, st, cs, dst):
        for i in (0, 2): e(f'v_pk_mul_f32 {v(ac+i,2)}, {v(ac+i,2)}, {v(st,2)} op_sel_hi:[1,0]')
        for i in (0, 2): e(f'v_pk_fma_f32 {v(ac+i,2)}, {v(cs+i,2)}, {v(st+2,2)}, {v(ac+i,2)} op_sel_hi:[1,0,1]')
        e(f'v_cvt_pk_bf16_f32 v{dst}, v{ac}, v{ac+1}\nv_cvt_pk_bf16_f32 v{dst+1}, v{ac+2}, v{ac+3}')
    e.auto = P('auto1', 8) if first else 0
    for r in range(4): e(f'v_mov_b32_dpp v{HB+r}, v{HA+r} row_newbcast:0 row_mask:0xf bank_mask:0xf')
    norm(HA, FSR + 8, HB, VW + 8)
    e(f'ds_write_b64 {vT2}, {v(VW + 8, 2)}', 'exw')
    if first: e.wait_lg('csr')
    for h in (0, 1):
        norm(acc1(1, 2+h), FSR + 4, CS + 4*(2+h), KP + h*6 + 4)
        e(f'ds_write_b64 {vT1}, {v(KP + h*6 + 4, 2)} offset:{1024 + 512*h}', 'exw')
    for t in (1, 0):
        for h in (0, 1):
            norm(acc1(t, 4+h), FSR + 4*t, CS + 4*(4+h), VW + (t*2+h)*2)
            e(f'ds_write_b64 {vT0}, {v(VW + (t*2+h)*2, 2)} offset:{1024 + 1024*t + 32*h}', 'exw')
    for h in (0, 1): norm(acc1(0, 2+h), FSR, CS + 4*(2+h), KP + h*6 + 2)
    e('s_waitcnt lgkmcnt(0)\ns_barrier')
    for h in (0, 1): e(f'ds_read_b64 {v(KP + 6*h, 2)}, {vT1} offset:{512*h}', 'exk')
    for h in (0, 1):
        for tt in range(3): e(f'ds_read_b64_tr_b16 {v(VP + 6*h + 2*tt, 2)}, {vT3} offset:{1024*tt + 32*h}', 'exv')
    for p in range(12, 16): q_dma('wo', p, wo_slot(p))
    e.auto = P('auto2', 8)
    for t in (1, 0):
        for h in (0, 1): norm(acc1(t, h), FSR + 4*t, CS + 4*h, QP + (t*2+h)*2)
    stamp()
    SP, SCU = 64, 80
    combos = [(1, 0), (1, 1), (0, 0), (0, 1)]
    for n, (t, h) in enumerate(combos):
        q = v(QP + (t*2 + h)*2, 2)
        if n == 2: e.wait_lg('exk')
        e(f'v_mfma_f32_16x16x16_bf16 {v(SCU + 4*n, 4)}, {v(KP + h*6 + 2*(t+1), 2)}, {q}, 0')
        e(f'v_mfma_f32_16x16x16_bf16 {v(SP + 4*n, 4)}, {v(KP + h*6 + 2*t, 2)}, {q}, {v(NEG,4) if t == 0 else "0"}')
    SV = 96
    MX = 104
    for n in range(4):
        for u in range(2):
            e(f'v_cndmask_b32 v{SCU+4*n+2*u}, v{SCU+4*n+2*u}, v{SCU+4*n+2*u+1}, {sPAR}')
            e(f'v_cndmask_b32 v{SP+4*n+2*u}, v{SP+4*n+2*u}, v{SP+4*n+2*u+1}, {sPAR}')
        for u in range(2):
            e(f'v_cndmask_b32 v{SV+2*n+u}, v{SP+4*n+2*u}, v{SCU+4*n+2*u}, {(sCUR0, sCUR1)[u]}')
        e(f'v_max_f32 v{MX+2*n}, v{SV+2*n}, v{SV+2*n+1}')
    e.drain(); e.auto = 0
    M0_, M1_, M2_, M3_ = MX, MX+2, MX+4, MX+6
    e(f'v_permlane32_swap_b32 v{M0_}, v{M1_}\nv_permlane32_swap_b32 v{M2_}, v{M3_}')
    e(f'v_max_f32 v{M0_}, v{M0_}, v{M1_}\nv_max_f32 v{M2_}, v{M2_}, v{M3_}')
    e(f'v_permlane16_swap_b32 v{M0_}, v{M2_}\nv_max_f32 v{M0_}, v{M0_}, v{M2_}')
    cexp = 0.25 * math.log2(math.e)
    e(f's_mov_b32 {sC1}, {hx(f2u(cexp))}')
    e(f'v_mul_f32 v{M0_}, {hx(f2u(-cexp))}, v{M0_}')
    e(f'v_mov_b32 v{M2_}, v{M0_}\nv_permlane16_swap_b32 v{M0_}, v{M2_}')
    e(f'v_mov_b32 v{M1_}, v{M0_}\nv_mov_b32 v{M3_}, v{M2_}')
    e(f'v_permlane32_swap_b32 v{M0_}, v{M1_}\nv_permlane32_swap_b32 v{M2_}, v{M3_}')
    PB = 64
    OA = 80
    SMA = 136
    for n in range(4):
        for u in range(2): e(f'v_fma_f32 v{SV+2*n+u}, v{SV+2*n+u}, {sC1}, v{MX+2*n}')
    for n in range(4):
        for u in range(2): e(f'v_exp_f32 v{SV+2*n+u}, v{SV+2*n+u}')
    for n in range(4): e(f'v_cvt_pk_bf16_f32 v{SV+2*n}, v{SV+2*n}, v{SV+2*n+1}')
    e.wait_lg('exv')
    for n, (t, h) in enumerate(combos):
        for i, sel in enumerate((SELP0, SELP1, SELC0, SELC1)):
            e(f'v_perm_b32 v{PB+4*n+i}, v{SV+2*n}, v{SV+2*n}, {sel}')
        if n:
            m, (t2, h2) = n - 1, combos[n-1]
            e(f'v_mfma_f32_16x16x32_bf16 {v(SMA+4*m,4)}, {v(ONES,4)}, {v(PB+4*m,4)}, 0')
            e(f'v_mfma_f32_16x16x32_bf16 {v(OA+4*m,4)}, {v(VP + h2*6 + 2*t2, 4)}, {v(PB+4*m,4)}, 0')
    e(f's_add_u32 {sT0}, {sOB}, {WS_O(l)}\ns_add_u32 {sT1}, {sT0}, 16384')
    e(f'v_mfma_f32_16x16x32_bf16 {v(SMA+12,4)}, {v(ONES,4)}, {v(PB+12,4)}, 0')
    e(f'v_mfma_f32_16x16x32_bf16 {v(OA+12,4)}, {v(VP + 6, 4)}, {v(PB+12,4)}, 0')
    OP = 96
    for n, (t, h) in enumerate(combos):
        e(f'v_rcp_f32 v{SMA+4*n}, v{SMA+4*n}')
        for i in (0, 2): e(f'v_pk_mul_f32 {v(OA+4*n+i,2)}, {v(OA+4*n+i,2)}, {v(SMA+4*n,2)} op_sel_hi:[1,0]')
        d = OP + t*4 + h*2
        e(f'v_cvt_pk_bf16_f32 v{d}, v{OA+4*n}, v{OA+4*n+1}\nv_cvt_pk_bf16_f32 v{d+1}, v{OA+4*n+2}, v{OA+4*n+3}')
        if h == 1:
            hstore(f'buffer_store_dwordx4 {v(OP + t*4, 4)}, {vL16}, {srd(WS)}, {(sT0, sT1)[t]} offen', 'ost', True)
    assert not e.side, len(e.side)
    stamp()
    publish(WS_FLAG(l, 0), f's_lshl_b32 {sT0}, {sTB}, 4\ns_add_u32 {sT0}, {sT0}, {sP}', True)
    for p in range(NWE, 12): dma('wo', p, wo_slot(p), 'pf')
    q_big('w1', 18, 28)
    e.drain(P('wa_drain', 6))

def p2_addr():
    e(f'v_lshrrev_b32 {vT0}, 2, {vL}')
    e(f'v_lshrrev_b32 {vT1}, 3, {vL}\nv_and_b32 {vT1}, 3, {vT1}')
    e(f'v_lshlrev_b32 {vT0}, 7, {vT0}\nv_lshl_add_u32 {vT0}, {vT1}, 5, {vT0}')
    e(f'v_and_b32 {vT1}, 3, {vL}\nv_lshl_add_u32 {vT0}, {vT1}, 3, {vT0}')
    for sg in range(4):
        e(f'v_xor_b32 v{vA[sg]}, {32*sg}, {vT0}')
        e(f'v_add_u32 v{vA[4+sg]}, {24*SLOT}, v{vA[sg]}')

def p2_tr(dst, slot, sg, h):
    st = slot // 24
    return f'ds_read_b64_tr_b16 {dst}, v{vA[st*4+sg]} offset:{(slot - st*24)*SLOT + h*2048}'

RS = 128
def phase2(l):
    p2_addr()
    AC = 64
    for ct in range(4):
        e(f'v_lshlrev_b32 v{AC+4*ct}, 16, v{CARRY+2*ct}\nv_and_b32 v{AC+4*ct+1}, 0xffff0000, v{CARRY+2*ct}')
        e(f'v_lshlrev_b32 v{AC+4*ct+2}, 16, v{CARRY+2*ct+1}\nv_and_b32 v{AC+4*ct+3}, 0xffff0000, v{CARRY+2*ct+1}')
    poll(WS_FLAG(l, 0), f's_lshr_b32 {sT0}, {sSB}, 1\ns_lshl_b32 {sT0}, {sT0}, 4', 16)
    stamp()
    OF = 128
    e(f's_lshl_b32 {sT0}, {sSB}, 2\ns_add_u32 {sT0}, {sT0}, {sW}\ns_lshl_b32 {sT0}, {sT0}, 14\ns_add_u32 {sT0}, {sT0}, {WS_O(l)}')
    def oload(p):
        if p and p % 4 == 0: e(f's_add_u32 {sT0}, {sT0}, 4096')
        e(f'buffer_load_dwordx4 {v(OF + 4*p, 4)}, {vL16}, {srd(WS)}, {sT0} offen offset:{(p % 4)*1024} sc1', ('o', p))
    lead = P('p2lead', 12)
    for p in range(lead): oload(p)
    NB, DW = 12, P('p2dw', 7)
    def reads(ph):
        p, ct = divmod(ph, 4)
        return [p2_tr(a((ph % NB)*4 + 2*h, 2), wo_slot(p), ct, h) for h in (0, 1)]
    for ph in range(DW):
        for r in reads(ph): e(r, ('f2', ph))
    AC = 64
    for p in range(16):
        for ct in range(4):
            ph = 4*p + ct
            e.wait_both(('o', p) if ct == 0 else None, ('f2', ph))
            ac = v(AC + 4*ct, 4)
            e(f'v_mfma_f32_16x16x32_bf16 {ac}, {a((ph % NB)*4, 4)}, {v(OF + 4*p, 4)}, {ac}')
            if ph + DW < 64:
                for r in reads(ph + DW): e(r, ('f2', ph + DW))
            if ct == 0:
                if p + lead < 16: oload(p + lead)
                else: e.drain(1)
    stamp()
    S_, Q_ = 96, 98
    e(f'v_pk_add_f32 {v(S_,2)}, {v(AC,2)}, {v(AC+2,2)}\nv_pk_mul_f32 {v(Q_,2)}, {v(AC,2)}, {v(AC,2)}')
    for i in range(2, 16, 2):
        e(f'v_pk_fma_f32 {v(Q_,2)}, {v(AC+i,2)}, {v(AC+i,2)}, {v(Q_,2)}')
        if i >= 4: e(f'v_pk_add_f32 {v(S_,2)}, {v(S_,2)}, {v(AC+i,2)}')
    e(f'v_add_f32 v{S_}, v{S_}, v{S_+1}\nv_add_f32 v{Q_}, v{Q_}, v{Q_+1}')
    e(f's_lshl_b32 {sT0}, {sSB}, 2\ns_add_u32 {sT0}, {sT0}, {sW}\ns_lshl_b32 {sT0}, {sT0}, 11\ns_add_u32 {sT0}, {sT0}, {WS_STAT(l)}')
    e(f'v_permlane32_swap_b32 v{S_}, v{Q_}\nv_add_f32 v{S_}, v{S_}, v{Q_}\nv_mov_b32 v{Q_}, v{S_}')
    e(f's_lshl_b32 {sT1}, {sDT}, 8\ns_add_u32 {sT1}, {sT1}, {sT0}')
    e(f'v_lshrrev_b32 {vT0}, 1, {vG}\nv_lshlrev_b32 {vT0}, 3, {vT0}\nv_lshl_add_u32 {vT0}, {vJ}, 4, {vT0}')
    e(f'v_permlane16_swap_b32 v{S_}, v{Q_}\nv_add_f32 v{S_}, v{S_}, v{Q_}\nv_mov_b32 v{S_+1}, {vTAG}')
    hstore(f'buffer_store_dwordx2 {v(S_, 2)}, {vT0}, {srd(WS)}, {sT1} offen', 'gran', True)
    XP = 100
    e(f's_lshl_b32 {sT1}, {sW}, 11\ns_add_u32 {sT1}, {sT1}, {SC}\nv_lshlrev_b32 {vT1}, 7, {vJ}\nv_lshl_add_u32 {vT1}, {vG}, 3, {vT1}\nv_add_u32 {vT1}, {sT1}, {vT1}')
    for ct in range(4):
        e(f'v_cvt_pk_bf16_f32 v{XP+2*ct}, v{AC+4*ct}, v{AC+4*ct+1}\nv_cvt_pk_bf16_f32 v{XP+2*ct+1}, v{AC+4*ct+2}, v{AC+4*ct+3}')
        e(f'ds_write_b64 {vT1}, {v(XP+2*ct, 2)} offset:{8192 + 32*ct}', 'x1w')
    e.drain()
    e(f'v_lshrrev_b32 {vT0}, 5, {vL}\nv_lshlrev_b32 {vT0}, 2, {vT0}\nv_lshrrev_b32 {vT2}, 2, {vL}\nv_and_b32 {vT2}, 3, {vT2}\nv_add_u32 {vT0}, {vT0}, {vT2}\nv_lshlrev_b32 {vT0}, 7, {vT0}')
    e(f'v_and_b32 {vT2}, 1, {vG}\nv_lshl_add_u32 {vT0}, {vT2}, 5, {vT0}\nv_and_b32 {vT2}, 1, {vL}\nv_lshl_add_u32 {vT0}, {vT2}, 4, {vT0}\nv_and_b32 {vT2}, 2, {vL}\nv_lshl_add_u32 {vT0}, {vT2}, 2, {vT0}')
    e(f's_lshl_b32 {sT2}, {sKH}, 6\ns_lshl_b32 {sT1}, {sMH}, 12\ns_add_u32 {sT2}, {sT2}, {sT1}\ns_add_u32 {sT2}, {sT2}, {SC}\nv_add_u32 {vT0}, {sT2}, {vT0}')
    e(f's_lshl_b32 {sT2}, {sKH}, 12\ns_lshl_b32 {sT1}, {sMH}, 6\ns_add_u32 {sT2}, {sT2}, {sT1}\ns_add_u32 {sT2}, {sT2}, {SC + 8192}')
    e(f'v_and_b32 {vT2}, 31, {vL}\nv_lshlrev_b32 {vT2}, 7, {vT2}\nv_lshrrev_b32 {vT3}, 5, {vL}\nv_lshl_add_u32 {vT2}, {vT3}, 4, {vT2}\nv_add_u32 {vT2}, {sT2}, {vT2}')
    e(f's_lshl_b32 {sT2}, {sDT}, 1\ns_add_u32 {sT2}, {sT2}, {sKH}\ns_lshl_b32 {sT2}, {sT2}, 17\ns_lshl_b32 {sT1}, {sSB}, 1\ns_add_u32 {sT1}, {sT1}, {sMH}\ns_lshl_b32 {sT1}, {sT1}, 11\ns_add_u32 {sT2}, {sT2}, {sT1}\ns_add_u32 {sT2}, {sT2}, {WS_H2(l)}')
    G0 = 108
    L = e.label('stat'); Ld = L + '_d'
    e(f's_mov_b32 {sCNT}, 30000')
    e(f'{L}:')
    e(f'buffer_load_dwordx4 {v(G0, 4)}, {vL16}, {srd(WS)}, {sT0} offen sc1', 'gp')
    e(f'buffer_load_dwordx4 {v(G0+4, 4)}, {vL16}, {srd(WS)}, {sT0} offen offset:1024 sc1', 'gp')
    e('s_waitcnt vmcnt(0)')
    e(f'v_xor_b32 v{G0+1}, v{G0+1}, {vTAG}\nv_xor_b32 v{G0+3}, v{G0+3}, {vTAG}\nv_xor_b32 v{G0+5}, v{G0+5}, {vTAG}\nv_xor_b32 v{G0+7}, v{G0+7}, {vTAG}')
    e(f'v_or_b32 v{G0+1}, v{G0+1}, v{G0+3}\nv_or3_b32 v{G0+1}, v{G0+1}, v{G0+5}, v{G0+7}')
    e(f'v_cmp_ne_u32 vcc, 0, v{G0+1}')
    e(f's_cbranch_vccz {Ld}')
    e(f's_sub_u32 {sCNT}, {sCNT}, 1\ns_cmp_lg_u32 {sCNT}, 0\ns_cbranch_scc1 {L}')
    e(f'{Ld}:')
    stamp()
    e(f'v_add_f32 v{S_}, v{G0}, v{G0+4}\nv_add_f32 v{Q_}, v{G0+2}, v{G0+6}')
    for sw in ('v_permlane32_swap_b32', 'v_permlane16_swap_b32'):
        e(f'v_mov_b32 v{S_+1}, v{S_}\nv_mov_b32 v{Q_+1}, v{Q_}')
        e(f'{sw} v{S_}, v{S_+1}\n{sw} v{Q_}, v{Q_+1}')
        e(f'v_add_f32 v{S_}, v{S_}, v{S_+1}\nv_add_f32 v{Q_}, v{Q_}, v{Q_+1}')
    ln_stats(f'v{S_}', f'v{Q_}', f'v{S_+1}', f'v{Q_+1}', G0, double=True)
    for ct in range(4):
        for i in (4*ct, 4*ct+2): e(f'v_pk_fma_f32 {v(AC+i,2)}, {v(AC+i,2)}, {v(S_,2)}, {v(Q_,2)} op_sel:[0,1,1] op_sel_hi:[1,1,1]')
        e(f'v_cvt_pk_bf16_f32 v{XP+2*ct}, v{AC+4*ct}, v{AC+4*ct+1}\nv_cvt_pk_bf16_f32 v{XP+2*ct+1}, v{AC+4*ct+2}, v{AC+4*ct+3}')
        e(f'ds_write_b64 {vT1}, {v(XP+2*ct, 2)} offset:{32*ct}', 'h2w')
    e('s_waitcnt lgkmcnt(0)\ns_barrier')
    HP = 80
    for kp in range(2):
        for h in range(2):
            e(f'ds_read_b64_tr_b16 {v(HP + 4*kp + 2*h, 2)}, {vT0} offset:{(16*kp + 8*h)*RS}', ('h2r', kp))
    for t in range(2): e(f'ds_read_b128 {v(CARRY + 4*t, 4)}, {vT2} offset:{32*t}', 'x1r')
    for kp in range(2):
        e.wait_lg(('h2r', kp))
        e(f'buffer_store_dwordx4 {v(HP + 4*kp, 4)}, {vL16}, {srd(WS)}, {sT2} offen offset:{1024*kp} sc1', 'h2st')
    stamp()
    e('s_waitcnt lgkmcnt(0)')
    publish(WS_FLAG(l, 1), f's_lshl_b32 {sT0}, {sDT}, 5\ns_add_u32 {sT0}, {sT0}, {sSB}')

def big_loop(kind, act_base_code, mid_cb, init_cb):
    nt = NT[kind]
    e(act_base_code)
    def areg(t, u): return 128 + (t % 13) * 8 + 4 * u
    def aload(t, u):
        if u == 0 and t and t % 2 == 0: e(f's_add_u32 {sXA}, {sXA}, 4096')
        e(f'buffer_load_dwordx4 {v(areg(t, u), 4)}, {vL16}, {srd(WS)}, {sXA} offen offset:{((t % 2)*2 + u)*1024} sc1', ('act', t, u))
    lead = P('lead', 7)
    for t in range(lead):
        for u in (0, 1): aload(t, u)
    FB = 96
    AC = 64
    NB, DW = 8, P('dw', 6)
    def reads(ph):
        t, f = divmod(ph, 4)
        return [big_tr(v(FB + (ph % NB)*4 + 2*h, 2), pair_of(kind, t), f >> 1, f & 1, h) for h in (0, 1)]
    for ph in range(DW):
        for r in reads(ph): e(r, (kind + 'f', ph))
    init_cb()
    e(f's_lshl_b32 {sT2}, {sW}, 12\ns_add_u32 {sT2}, {sT2}, {SC}\nv_add_u32 {vT0}, {sT2}, {vL16}\nv_xor_b32 {vT1}, 8192, {vT0}')
    for t in range(nt):
        if t == 18:
            e('s_barrier')
            mid_cb()
        for f in ((0, 1, 2, 3) if t < nt - 1 else (1, 3, 0, 2)):
            u, sg = f >> 1, f & 1
            ph = 4*t + f
            e.wait_both(('act', t, u) if sg == (0 if t < nt - 1 else 1) else None, (kind + 'f', ph) if t < 18 else None)
            ac = v(AC + 16*sg, 16)
            W_ = v(FB + (ph % NB)*4, 4) if t < 18 else a(areg_of(kind, t) + 4*f, 4)
            X_ = v(areg(t, u), 4)
            A, B = (W_, X_) if kind == 'w1' else (X_, W_)
            e(f'v_mfma_f32_32x32x16_bf16 {ac}, {A}, {B}, {"0" if t == 0 and u == 0 and sg == 1 else ac}')
            if ph + DW < 72:
                for r in reads(ph + DW): e(r, (kind + 'f', ph + DW))
            if sg == 0:
                if t + lead < nt: aload(t + lead, u)
                else: e.drain(1)
    stamp()
    assert SC % 16384 == 0
    for i in range(4): e(f'ds_write_b128 {vT0}, {v(AC + 16 + 4*i, 4)} offset:{1024*i}', 'xw')
    e('s_waitcnt lgkmcnt(0)\ns_barrier')
    for i in range(4): e(f'ds_read_b128 {v(96 + 4*i, 4)}, {vT1} offset:{1024*i}', ('xr', i))
    e.drain(P('xdrain', 2))

def w2_window():
    q_big('w2', 0, 8); e.drain()
    preread('w2', 18, 28)
    e('s_waitcnt lgkmcnt(0)\ns_barrier')
    q_big('w2', 8, 18); e.drain()

def phase3(l):
    Lskip, Lend = e.label('p3skip'), e.label('p3end')
    e(f's_cmp_ge_u32 {sI}, 28\ns_cbranch_scc1 {Lskip}')
    for t in range(28, 32):
        for kh in (0, 1): dma('w1', kh*32 + t, pair_of('w1', t)*2 + kh, 'wB')
    q_big('w1', 0, 4); e.drain()
    preread('w1', 18, 28)
    e('s_waitcnt lgkmcnt(0)'); e.wait_vm('wB'); e('s_barrier')
    preread('w1', 28, 32)
    q_big('w1', 4, 14); e.drain()
    e('s_waitcnt lgkmcnt(0)\ns_barrier')
    q_big('w1', 14, 18); e.drain()
    e(f's_lshl_b32 {sT0}, {sKH}, 6\ns_add_u32 {sT0}, {sT0}, {sBW1}\nv_lshrrev_b32 {vT0}, 5, {vL}\nv_lshlrev_b32 {vT0}, 3, {vT0}')
    for b in range(4): e(f'buffer_load_dwordx2 {v(BIAS + 2*b, 2)}, {vT0}, {srd(B1)}, {sT0} offen offset:{16*b}', 'b1')
    poll(WS_FLAG(l, 1), f's_lshl_b32 {sT0}, {sDT3}, 5', 32)
    stamp()
    AC = 64
    k0 = -2.0 * math.sqrt(2.0 / math.pi) * math.log2(math.e)
    def init():
        for b in range(8):
            e(f'v_lshlrev_b32 v{AC+2*b}, 16, v{BIAS+b}\nv_and_b32 v{AC+2*b+1}, 0xffff0000, v{BIAS+b}')
        e(f'v_mov_b32 v{BIAS}, {hx(f2u(k0 * 0.044715))}\nv_mov_b32 v{BIAS+2}, {hx(f2u(k0))}')
        e(f's_lshl_b32 {sT0}, {sDT3}, 1\ns_add_u32 {sT0}, {sT0}, {sMH}\ns_mul_i32 {sT0}, {sT0}, 56\ns_lshl_b32 {sT1}, {sFT}, 1\ns_add_u32 {sT0}, {sT0}, {sT1}\ns_add_u32 {sT0}, {sT0}, {sKH}')
        e(f's_lshl_b32 {sT0}, {sT0}, 11\ns_add_u32 {sT0}, {sT0}, {WS_U(l)}')
    big_loop('w1', f's_lshl_b32 {sXA}, {sDT3}, 1\ns_add_u32 {sXA}, {sXA}, {sMH}\ns_lshl_b32 {sXA}, {sXA}, 1\ns_add_u32 {sXA}, {sXA}, {sKH}\n'
             f's_lshl_b32 {sXA}, {sXA}, 16\ns_add_u32 {sXA}, {sXA}, {WS_H2(l)}', lambda: q_big('w2', 18, 28), init)
    TT = 80
    UP = 116
    e.auto = P('auto3', 8)
    for m in (0, 1):
        for i in (2*m, 2*m+1):
            e(f's_waitcnt lgkmcnt({3-i})')
            for r in (0, 2): e(f'v_pk_add_f32 {v(AC+4*i+r,2)}, {v(AC+4*i+r,2)}, {v(96+4*i+r,2)}')
        idx = range(8*m, 8*m+8); id2 = range(8*m, 8*m+8, 2)
        for i in id2: e(f'v_pk_mul_f32 {v(TT+i,2)}, {v(AC+i,2)}, {v(AC+i,2)}')
        for i in id2: e(f'v_pk_fma_f32 {v(TT+i,2)}, {v(TT+i,2)}, {v(BIAS,2)}, {v(BIAS+2,2)} op_sel_hi:[1,0,0]')
        for i in id2: e(f'v_pk_mul_f32 {v(TT+i,2)}, {v(TT+i,2)}, {v(AC+i,2)}')
        for i in idx: e(f'v_exp_f32 v{TT+i}, v{TT+i}')
        for i in id2: e(f'v_pk_add_f32 {v(TT+i,2)}, {v(TT+i,2)}, 1.0 op_sel_hi:[1,0]')
        for i in idx: e(f'v_rcp_f32 v{TT+i}, v{TT+i}')
        for i in id2: e(f'v_pk_mul_f32 {v(AC+i,2)}, {v(AC+i,2)}, {v(TT+i,2)}')
        for i in range(4): e(f'v_cvt_pk_bf16_f32 v{UP+4*m+i}, v{AC+8*m+2*i}, v{AC+8*m+2*i+1}')
        if m == 0: e.drain(); e.auto = 0
        e(f'buffer_store_dwordx4 {v(UP+4*m, 4)}, {vL16}, {srd(WS)}, {sT0} offen offset:{1024*m} sc1', 'ust')
    stamp()
    publish(WS_FLAG(l, 2), f's_lshl_b32 {sT0}, {sDT3}, 5\ns_add_u32 {sT0}, {sT0}, {sFT}')
    e(f's_branch {Lend}')
    e(f'{Lskip}:')
    if P('w2warm', 1):
        e(f'v_lshrrev_b32 {vT0}, 2, {vL}\nv_lshlrev_b32 {vT0}, 12, {vT0}\nv_and_b32 {vT1}, 3, {vL}\nv_lshl_add_u32 {vT0}, {vT1}, 7, {vT0}')
        e(f's_and_b32 {sT0}, {sI}, 3\ns_lshl_b32 {sT0}, {sT0}, 2\ns_add_u32 {sT0}, {sT0}, {sW}\ns_mul_i32 {sT0}, {sT0}, {112*4096}\ns_lshl_b32 {sT1}, {sX}, 9\ns_add_u32 {sT0}, {sT0}, {sT1}')
        for q in range(7):
            e(f'buffer_load_dword v{64+q}, {vT0}, {srd(W2)}, {sT0} offen', 'pf')
            e(f's_add_u32 {sT0}, {sT0}, {16*4096}')
    q_big('w2', 18, 28); e.drain()
    e('s_waitcnt vmcnt(0)\ns_barrier')
    e(f'{Lend}:')
    w2_window()

def phase4(l):
    last = l == 1
    e(f's_lshl_b32 {sT0}, {sKH}, 6\ns_add_u32 {sT0}, {sT0}, {sBW2}\nv_and_b32 {vT0}, 31, {vL}\nv_lshlrev_b32 {vT0}, 1, {vT0}')
    e(f'buffer_load_ushort v{BIAS}, {vT0}, {srd(B2)}, {sT0} offen', 'b2')
    if not last and P('pretouch', 1):
        e(f's_lshl_b32 {sT0}, {sSB}, 1\ns_add_u32 {sT0}, {sT0}, {sKH}\ns_lshl_b32 {sT0}, {sT0}, 15')
        e(f's_lshl_b32 {sT1}, {sDT}, 1\ns_add_u32 {sT1}, {sT1}, {sMH}\ns_lshl_b32 {sT1}, {sT1}, 10\ns_add_u32 {sT0}, {sT0}, {sT1}\ns_add_u32 {sT0}, {sT0}, {WS_X2}')
        e(f's_mov_b64 exec, 0xffff\nbuffer_load_dword v{BIAS+1}, v{vA[11]}, {srd(WS)}, {sT0} offen', 'pf')
        e(f's_lshl_b32 {sT0}, {sSB}, 3\ns_add_u32 {sT0}, {sT0}, {sDT}\ns_mul_i32 {sT0}, {sT0}, {FSTR}\ns_add_u32 {sT0}, {sT0}, {WS_FLAG(l, 3)}')
        e(f's_mov_b64 exec, 1\nbuffer_load_dword v{BIAS+3}, v{vA[11]}, {srd(WS)}, {sT0} offen', 'pf')
        e(f's_lshl_b32 {sT0}, {sSB}, 3\ns_add_u32 {sT0}, {sT0}, {sDT}\ns_lshl_b32 {sT0}, {sT0}, 2\ns_add_u32 {sT0}, {sT0}, {sW}\ns_lshl_b32 {sT0}, {sT0}, 8\ns_add_u32 {sT0}, {sT0}, {WS_PS}')
        e(f's_mov_b64 exec, 3\nbuffer_load_dword v{BIAS+4}, v{vA[11]}, {srd(WS)}, {sT0} offen\ns_mov_b64 exec, -1', 'pf')
    poll(WS_FLAG(l, 2), f's_lshl_b32 {sT0}, {sDT}, 5', 28)
    stamp()
    def mid():
        if not last:
            for sl in range(24): q_dma('qkv', sl, sl)
    AC = 64
    def init():
        e(f'v_lshlrev_b32 v{BIAS}, 16, v{BIAS}')
        for i in range(8):
            e(f'v_lshlrev_b32 v{AC+2*i}, 16, v{CARRY+i}\nv_and_b32 v{AC+2*i+1}, 0xffff0000, v{CARRY+i}')
        for i in range(0, 16, 2): e(f'v_pk_add_f32 {v(AC+i,2)}, {v(AC+i,2)}, {v(BIAS,2)} op_sel_hi:[1,0]')
        e(f's_lshl_b32 {sT0}, {sSB}, 1\ns_add_u32 {sT0}, {sT0}, {sKH}\nv_lshrrev_b32 {vT3}, 5, {vL}')
        if last:
            e(f's_lshl_b32 {sT0}, {sT0}, 15\ns_add_u32 {sT0}, {sT0}, {sBWO}\ns_lshl_b32 {sT1}, {sMH}, 6\ns_add_u32 {sT0}, {sT0}, {sT1}')
            e(f'v_and_b32 {vT2}, 31, {vL}\nv_lshlrev_b32 {vT2}, 10, {vT2}\nv_lshl_add_u32 {vT2}, {vT3}, 4, {vT2}')
        else:
            e(f's_lshl_b32 {sT1}, {sDT}, 1\ns_add_u32 {sT1}, {sT1}, {sMH}\ns_lshl_b32 {sXB}, {sT0}, 12\ns_lshl_b32 {sT4}, {sT1}, 3\ns_add_u32 {sXB}, {sXB}, {sT4}\ns_add_u32 {sXB}, {sXB}, {WS_PS}')
            e(f'v_and_b32 v{BIAS+2}, 31, {vL}\nv_lshlrev_b32 v{BIAS+2}, 7, v{BIAS+2}\nv_lshl_add_u32 v{BIAS+2}, {vT3}, 2, v{BIAS+2}')
            e(f's_lshl_b32 {sT0}, {sT0}, 15\ns_lshl_b32 {sT1}, {sT1}, 10\ns_add_u32 {sT0}, {sT0}, {sT1}\ns_add_u32 {sT0}, {sT0}, {WS_X2}')
            e(f'v_and_b32 {vT2}, 1, {vG}\nv_lshlrev_b32 {vT2}, 14, {vT2}\nv_lshl_add_u32 {vT2}, {vT3}, 8, {vT2}\nv_lshl_add_u32 {vT2}, {vJ}, 4, {vT2}')
    big_loop('w2', f's_lshl_b32 {sXA}, {sDT}, 1\ns_add_u32 {sXA}, {sXA}, {sMH}\ns_lshl_b32 {sXA}, {sXA}, 1\ns_add_u32 {sXA}, {sXA}, {sKH}\n'
             f's_mul_i32 {sXA}, {sXA}, {56*1024}\ns_add_u32 {sXA}, {sXA}, {WS_U(l)}', mid, init)
    XP = 80
    for m in range(2):
        for i in (2*m, 2*m+1):
            e(f's_waitcnt lgkmcnt({3-i})')
            for r in (0, 2): e(f'v_pk_add_f32 {v(AC+4*i+r,2)}, {v(AC+4*i+r,2)}, {v(96+4*i+r,2)}')
        for i in range(4): e(f'v_cvt_pk_bf16_f32 v{XP+4*m+i}, v{AC+8*m+2*i}, v{AC+8*m+2*i+1}')
        if last: e(f'buffer_store_dwordx4 {v(XP+4*m, 4)}, {vT2}, {srd(OUTS)}, {sT0} offen offset:{32*m}', 'xst')
        else: hstore(f'buffer_store_dwordx4 {v(XP+4*m, 4)}, {vT2}, {srd(WS)}, {sT0} offen offset:{512*m}', 'xst', True)
    if not last:
        S2, Q2 = 96, 98
        e(f'v_pk_add_f32 {v(S2,2)}, {v(AC,2)}, {v(AC+2,2)}\nv_pk_mul_f32 {v(Q2,2)}, {v(AC,2)}, {v(AC,2)}')
        for i in range(2, 16, 2):
            e(f'v_pk_fma_f32 {v(Q2,2)}, {v(AC+i,2)}, {v(AC+i,2)}, {v(Q2,2)}')
            if i >= 4: e(f'v_pk_add_f32 {v(S2,2)}, {v(S2,2)}, {v(AC+i,2)}')
        e(f'v_add_f32 v{S2}, v{S2}, v{S2+1}\nv_add_f32 v{Q2}, v{Q2}, v{Q2+1}')
        e(f'v_permlane32_swap_b32 v{S2}, v{Q2}\nv_add_f32 v{S2}, v{S2}, v{Q2}')
        hstore(f'buffer_store_dword v{S2}, v{BIAS+2}, {srd(WS)}, {sXB} offen', 'pst', True)
    stamp()
    if last: return
    publish(WS_FLAG(l, 3), f's_lshl_b32 {sT0}, {sSB}, 3\ns_add_u32 {sT0}, {sT0}, {sDT}', True)
    Lh = e.label('hc')
    e(f's_and_b32 {sT0}, {sSB}, {sKH}\ns_and_b32 {sT0}, {sT0}, 1\ns_cmp_eq_u32 {sT0}, 0\ns_cbranch_scc1 {Lh}')
    e(f's_lshr_b32 {sT0}, {sSB}, 1\ns_lshl_b32 {sT0}, {sT0}, 14\ns_add_u32 {sT0}, {sT0}, {sT1}\ns_add_u32 {sT0}, {sT0}, {WS_XH}')
    e('s_mov_b32 exec_lo, 0xffff0000\ns_mov_b32 exec_hi, 0xffff0000')
    for m in range(2):
        e(f'buffer_store_dwordx4 {v(XP+4*m, 4)}, {vT2}, {srd(WS)}, {sT0} offen offset:{512*m} sc1', None); e.vm.pop()
    e(f's_mov_b64 exec, -1\n{Lh}:')
    e(f's_lshl_b32 {sT0}, {sKH}, 12\ns_lshl_b32 {sT1}, {sMH}, 6\ns_add_u32 {sT0}, {sT0}, {sT1}\ns_add_u32 {sT0}, {sT0}, {SC}')
    e(f'v_and_b32 {vT2}, 31, {vL}\nv_lshlrev_b32 {vT2}, 7, {vT2}\nv_lshl_add_u32 {vT2}, {vT3}, 4, {vT2}\nv_add_u32 {vT2}, {sT0}, {vT2}')
    for m in range(2): e(f'ds_write_b128 {vT2}, {v(XP+4*m, 4)} offset:{32*m}', 'x2w')
    e(f's_lshl_b32 {sT1}, {sW}, 11\ns_add_u32 {sT1}, {sT1}, {SC}\nv_lshlrev_b32 {vT1}, 7, {vJ}\nv_lshl_add_u32 {vT1}, {vG}, 3, {vT1}\nv_add_u32 {vT1}, {sT1}, {vT1}')
    e('s_waitcnt lgkmcnt(0)\ns_barrier')
    for ct in range(4): e(f'ds_read_b64 {v(CARRY+2*ct, 2)}, {vT1} offset:{32*ct}', 'x2r')
    e.drain()
    e('s_waitcnt lgkmcnt(0)\ns_barrier')

def epilogue():
    L = e.label('ep')
    e(f's_or_b32 {sT0}, s2, {sW}\ns_cmp_lg_u32 {sT0}, 0\ns_cbranch_scc1 {L}')
    e(f'v_mov_b32 {vT0}, 0\ns_mov_b64 exec, 1')
    e(f'buffer_store_dword {vTAG}, {vT0}, {srd(WS)}, 0 offen sc1')
    e('s_mov_b64 exec, -1')
    e(f'{L}:')
    if STAMPS:
        stamp(); cstamp(63)
        e(f's_lshl_b32 {sT0}, {sI}, 3\ns_add_u32 {sT0}, {sT0}, {sX}\ns_lshl_b32 {sT0}, {sT0}, 2\ns_add_u32 {sT0}, {sT0}, {sW}\ns_lshl_b32 {sT0}, {sT0}, 8\ns_add_u32 {sT0}, {sT0}, {WS_DBG}')
        e(f'v_lshlrev_b32 {vT0}, 2, {vL}')
        e(f'buffer_store_dword {vSTAMP}, {vT0}, {srd(WS)}, {sT0} offen')
    e('s_endpgm')
    e.raw('L_end:')

prologue()
for l in range(2):
    phase1(l); phase2(l); phase3(l); phase4(l)
assert not e.side
epilogue()

hdr = open('interleave_layers__sliding_local_dilated__mixer_token_mlp__prompt.s.ref').read().split('; Override')[0]
desc = f""".section .rodata,"a"
.p2align 6
.amdhsa_kernel {NAME}
  .amdhsa_next_free_vgpr 512
  .amdhsa_next_free_sgpr 102
  .amdhsa_accum_offset 256
  .amdhsa_group_segment_fixed_size 0
  .amdhsa_kernarg_size 88
  .amdhsa_user_sgpr_count 2
  .amdhsa_user_sgpr_kernarg_segment_ptr 1
  .amdhsa_system_sgpr_workgroup_id_x 1
.end_amdhsa_kernel
"""
open(OUT, 'w').write(hdr + f'; @launch grid=(256,1,1) block=(256,1,1) lds={LDS_BYTES}\n.amdgcn_target "amdgcn-amd-amdhsa--gfx950"\n.text\n' + e.text() + desc)
print('instructions', e.ninstr, 'stamps', nstamp[0])
```

```python
import sys, struct, math
sys.path.insert(0, 'gen')
from emit import Emitter

NAME = 'interleave_layers__sliding_local_dilated__mixer_token_mlp__prompt_kernel'
OUT = [a for a in sys.argv[1:] if not a.startswith('--')][0]
EXP = {}
for a_ in sys.argv[1:]:
    if a_.startswith('--'):
        k_, _, v_ = a_[2:].partition('=')
        EXP[k_] = int(v_) if v_ else 1
STAMPS = 'stamps' in EXP
def P(name, default): return EXP.get(name, default)

def f2u(x): return struct.unpack('<I', struct.pack('<f', x))[0]
def hx(x): return '0x%08x' % (x & 0xffffffff)

WS_FLAG = lambda l, ph: 0x10000 * (1 + l * 4 + ph)
WS_STAT = lambda l: 0x100000 + l * 0x40000
WS_O = lambda l: 0x200000 + l * 0x200000
WS_H2 = lambda l: 0x600000 + l * 0x200000
WS_U = lambda l: 0xA00000 + l * 0x200000
WS_X2 = 0xE00000
WS_W2 = 0x1100000
WS_XH = 0x1000000
WS_FH = 0x90000
WS_FS = lambda l: 0xB0000 + l * 0x8000
WS_PS = 0x180000
WS_XCC = 0xA0000
WS_DBG = 0x2000000
FSTR = 128

SLOT = 4096
NSLOT = 36
SC = NSLOT * SLOT
LDS_BYTES = SC + 16384
assert LDS_BYTES == 163840
HALO = SC
XS = 24 * SLOT
P1S = 32 * SLOT
VT = P1S
KX = P1S + 9216
CSX = P1S + 9216 + 5120
NWE = 8

X0, WQKV, WO, W1, W2, B1, B2, OUTS, WS = 4, 8, 12, 16, 20, 24, 28, 32, 36
def srd(n): return f's[{n}:{n+3}]'
sTAG, sW, sX, sI, sM0 = 's40', 's41', 's42', 's43', 's44'
sTB, sP, sSB, sDT, sDT3, sFT, sKH, sMH = 's45', 's46', 's47', 's48', 's49', 's50', 's51', 's52'
sBQKV, sBWO, sBW1, sBW2 = 's53', 's54', 's55', 's56'
sROT = 's57'
sT0, sT1, sT2, sT3, sT4 = 's60', 's61', 's62', 's63', 's3'
sPAR, sCUR0, sCUR1 = 's[64:65]', 's[66:67]', 's[68:69]'
sWT, sOB, sFSB, sW2P = 's76', 's77', 's78', 's79'
RP = P('repack', 0)
sCNT = 's70'
sC1 = 's71'
sXA, sXB, sXH, sFAST = 's72', 's73', 's74', 's100'
sXM = 's101'
sKQ = [f's{84+i}' for i in range(8)]
sKX = [f's{92+i}' for i in range(8)]

vL, vG, vJ, vL16, vXR = 'v1', 'v2', 'v3', 'v4', 'v5'
vDQ, vDO, vD1, vD2 = 'v6', 'v7', 'v8', 'v9'
vA = list(range(10, 22))
vT0, vT1, vT2, vT3 = 'v22', 'v23', 'v24', 'v25'
vTAG = 'v26'
vL8 = 'v27'
ONES = 28
CARRY = 32
SELP0, SELP1, SELC0, SELC1 = 'v40', 'v41', 'v42', 'v43'
NEG = 44
BIAS = 48
XB = 136
CS = 232
vB = list(range(56, 62))
vP0, vP1 = 'v62', 'v63'
vSTAMP = 'v0'

e = Emitter()
def v(n, w=1): return f'v{n}' if w == 1 else f'v[{n}:{n+w-1}]'
def a(n, w=1): return f'a{n}' if w == 1 else f'a[{n}:{n+w-1}]'

nstamp = [0]
def stamp():
    if not STAMPS: return
    au = e.auto; e.auto = 0
    e(f's_memrealtime s[58:59]\ns_waitcnt lgkmcnt(0)\nv_writelane_b32 {vSTAMP}, s58, {nstamp[0]}')
    e.auto = au
    nstamp[0] += 1
def cstamp(idx):
    if not STAMPS: return
    e(f's_memtime s[58:59]\ns_waitcnt lgkmcnt(0)\nv_writelane_b32 {vSTAMP}, s58, {idx}')

def dma(kind, idx, slot, tag):
    if kind == 'qkv':
        kk, seg = divmod(idx, 3)
        off, base, vo, s = seg * 1024, sKQ[kk], vDQ, WQKV
    elif kind == 'wo':
        off, base, vo, s = idx * 32 * 1024, sBWO, vDO, WO
    elif kind == 'w1':
        off, base, vo, s = idx * 32 * 3584, sBW1, vD1, W1
    elif kind == 'w2':
        off, base, vo, s = idx * 32 * 4096, sBW2, vD2, W2
        if RP: off, base, s = idx * 4096, sW2P, WS
    e(f's_add_u32 m0, {sM0}, {slot * SLOT}')
    e(f's_add_u32 {sT3}, {base}, {off}')
    e(f'buffer_load_dwordx4 {vo}, {srd(s)}, {sT3} offen{" sc1" if kind == "w2" and RP else ""} lds', tag)

def wo_slot(p): return 24 + p if p < 12 else p - 12
NT = {'w1': 32, 'w2': 28}
def pair_of(kind, t):
    if kind == 'w1':
        if t < 18: return (t + 16) % 18
        return 2 + (t - 18)
    return t if t < 18 else 8 + (t - 18)
def areg_of(kind, t):
    if kind == 'w1': return (48 + 16 * (t - 18)) % 256
    return 16 * (t - 18)

def q_dma(kind, idx, slot): e.side.append(lambda: dma(kind, idx, slot, 'pf'))
def q_big(kind, t0, t1):
    for t in range(t0, t1):
        for kh in (0, 1): q_dma(kind, kh * NT[kind] + t, pair_of(kind, t) * 2 + kh)

def big_tr(dst, pair, u, sg, h):
    st = pair // 6
    return f'ds_read_b64_tr_b16 {dst}, v{vB[st*2+sg]} offset:{(pair - st*6)*2*SLOT + u*2048 + h*1024}'
def preread(kind, t0, t1, every=0):
    n = 0
    for t in range(t0, t1):
        for u in (0, 1):
            for sg in (0, 1):
                for h in (0, 1):
                    if every and n % every == 0: e.drain(1)
                    n += 1
                    e(big_tr(a(areg_of(kind, t) + (u*2+sg)*4 + 2*h, 2), pair_of(kind, t), u, sg, h), 'pre')

def hstore(text, tag, local):
    if not local or not P('fast', 1):
        e(text + ' sc1', tag); return
    au = e.auto; e.auto = 0
    Lf, Lj = e.label('hs_f'), e.label('hs_j')
    e(f's_cmp_lg_u32 {sFAST}, 0\ns_cbranch_scc1 {Lf}')
    e(text + ' sc1', tag)
    e(f's_branch {Lj}\n{Lf}:')
    e(text, tag); e.vm.pop()
    e(f'{Lj}:')
    e.auto = au

def put_flag(flag_base, idx_code, local):
    L = e.label('pub')
    e(f's_cmp_lg_u32 {sW}, 0\ns_cbranch_scc1 {L}')
    e(idx_code)
    e(f's_mul_i32 {sT0}, {sT0}, {FSTR}\ns_add_u32 {sT0}, {sT0}, {flag_base}')
    e(f'v_mov_b32 {vP0}, 0\ns_mov_b64 exec, 1')
    hstore(f'buffer_store_dword {vTAG}, {vP0}, {srd(WS)}, {sT0} offen', 'flag', local); e.vm.pop()
    e('s_mov_b64 exec, -1')
    e(f'{L}:')

def publish(flag_base, idx_code, local=False, tag=None, pre=0):
    if tag is not None:
        e.drain(pre); e.wait_vm(tag)
    else: e('s_waitcnt vmcnt(0)')
    e('s_waitcnt lgkmcnt(0)\ns_barrier')
    put_flag(flag_base, idx_code, local)
    if P('cpf2', 0) and (not local or P('cpf2', 0) > 1): code_prefetch(vP1)
    if 'hopst' in EXP: stamp()

def poll(flag_base, first_code, count):
    L = e.label('poll'); Ld = L + '_d'
    if 'hopst' in EXP: stamp()
    e(f's_cmp_lg_u32 {sW}, 0\ns_cbranch_scc1 {Ld}')
    e(first_code)
    e(f's_mul_i32 {sT0}, {sT0}, {FSTR}\ns_add_u32 {sT0}, {sT0}, {flag_base}')
    e(f'v_min_u32 {vP0}, {count - 1}, {vL}')
    e(f'v_mul_u32_u24 {vP0}, {FSTR}, {vP0}')
    e(f's_mov_b32 {sCNT}, 30000')
    e(f'{L}:')
    e(f'buffer_load_dword {vP1}, {vP0}, {srd(WS)}, {sT0} offen sc1', 'poll')
    e('s_waitcnt vmcnt(0)')
    e(f'v_cmp_ne_u32 vcc, {vP1}, {vTAG}')
    e(f's_cbranch_vccz {Ld}')
    e(f's_sub_u32 {sCNT}, {sCNT}, 1\ns_cmp_lg_u32 {sCNT}, 0\ns_cbranch_scc1 {L}')
    e(f'{Ld}:')
    e('s_waitcnt vmcnt(0) lgkmcnt(0)\ns_barrier')

def prologue():
    e.raw(f'.globl {NAME}\n.p2align 8\n.type {NAME},@function\n{NAME}:')
    e(f's_cmp_lt_u32 s2, 256\ns_cbranch_scc1 L_go\ns_endpgm\nL_go:')
    e('s_load_dwordx16 s[64:79], s[0:1], 0\ns_load_dwordx2 s[80:81], s[0:1], 64\ns_load_dwordx2 s[82:83], s[0:1], 80')
    e(f'v_lshrrev_b32 {vT0}, 6, v0\nv_and_b32 {vL}, 63, v0')
    e(f'v_readfirstlane_b32 {sW}, {vT0}')
    e(f's_getreg_b32 {sXM}, hwreg(HW_REG_XCC_ID)\ns_and_b32 {sXM}, {sXM}, 15\ns_and_b32 {sX}, s2, 7\ns_lshr_b32 {sI}, s2, 3\ns_mov_b32 {sFAST}, 0')
    e(f'v_lshrrev_b32 {vG}, 4, {vL}\nv_and_b32 {vJ}, 15, {vL}\nv_lshlrev_b32 {vL16}, 4, {vL}\nv_lshlrev_b32 {vL8}, 3, {vL}')
    e(f's_lshl_b32 {sM0}, {sW}, 10')
    e(f's_lshr_b32 {sT0}, {sI}, 4\ns_lshl_b32 {sTB}, {sX}, 1\ns_add_u32 {sTB}, {sTB}, {sT0}\ns_and_b32 {sP}, {sI}, 15')
    e(f's_lshl_b32 {sBQKV}, {sP}, 6')
    e(f's_add_u32 {sROT}, {sP}, {sTB}' if P('rot', 1) else f's_mov_b32 {sROT}, 0')
    for i in range(8):
        e(f's_add_u32 {sKX[i]}, {sROT}, {i}\ns_and_b32 {sKX[i]}, {sKX[i]}, 7\ns_mul_i32 {sKQ[i]}, {sKX[i]}, {64*3072}\ns_add_u32 {sKQ[i]}, {sKQ[i]}, {sBQKV}')
    e(f'v_lshrrev_b32 {vT0}, 2, {vL}\ns_lshl_b32 {sT0}, {sW}, 4\nv_add_u32 {vT0}, {sT0}, {vT0}\nv_mul_u32_u24 {vDQ}, 3072, {vT0}')
    e(f'v_lshrrev_b32 {vT0}, 5, {vL}\nv_lshlrev_b32 {vT0}, 1, {vT0}\nv_and_b32 {vT1}, 3, {vL}\nv_xor_b32 {vT0}, {vT0}, {vT1}\nv_lshl_add_u32 {vDQ}, {vT0}, 4, {vDQ}')
    e(f'v_lshrrev_b32 {vT0}, 3, {vL}\nv_and_b32 {vT1}, 7, {vL}\nv_xor_b32 {vT1}, {vT1}, {vT0}\nv_lshlrev_b32 {vT1}, 4, {vT1}\nv_lshl_add_u32 {vXR}, {vT0}, 10, {vT1}')
    if STAMPS: e(f'v_mov_b32 {vSTAMP}, 0')
    code_prefetch()
    e('s_waitcnt lgkmcnt(0)')
    e(f's_load_dword {sTAG}, s[82:83], 0')
    for n, src, size in ((X0, 64, 2097152), (WQKV, 66, 1572864), (WO, 68, 524288), (W1, 72, 7340032), (B1, 74, 3584),
                         (W2, 76, 7340032), (B2, 78, 4096), (OUTS, 80, 2097152), (WS, 82, 0x10000000)):
        e(f's_mov_b32 s{n}, s{src}\ns_and_b32 s{n+1}, s{src+1}, 0xffff\ns_mov_b32 s{n+2}, {size}\ns_mov_b32 s{n+3}, 0x20000')

def code_prefetch(dst='a253'):
    if not P('cpf', 1): return
    Lp = e.label('L_pc')
    e(f's_getpc_b64 s[58:59]')
    e.raw(f'{Lp}:')
    e(f's_sub_u32 s58, s58, {Lp}-{NAME}\ns_subb_u32 s59, s59, 0')
    e(f's_lshl_b32 {sT4}, {sI}, 2\ns_add_u32 {sT4}, {sT4}, {sW}\ns_lshl_b32 {sT4}, {sT4}, 9')
    e(f'v_lshlrev_b32 {vP0}, 7, {vL}\nv_add_u32 {vP0}, {sT4}, {vP0}\nv_min_u32 {vP0}, L_end-{NAME}-4, {vP0}')
    e(f's_mov_b64 exec, 15\nglobal_load_dword {dst}, {vP0}, s[58:59]\ns_mov_b64 exec, -1', 'pf')

def late_setup():
    e(f's_lshr_b32 {sT0}, {sI}, 3\ns_lshl_b32 {sSB}, {sX}, 2\ns_add_u32 {sSB}, {sSB}, {sT0}\ns_and_b32 {sDT}, {sI}, 7')
    e(f's_and_b32 {sT0}, {sX}, 1\ns_lshl_b32 {sT0}, {sT0}, 2\ns_and_b32 {sDT3}, {sI}, 3\ns_add_u32 {sDT3}, {sDT3}, {sT0}')
    e(f's_lshr_b32 {sT0}, {sX}, 1\ns_mul_i32 {sT0}, {sT0}, 7\ns_lshr_b32 {sFT}, {sI}, 2\ns_add_u32 {sFT}, {sFT}, {sT0}')
    e(f's_min_u32 {sFT}, {sFT}, 27')
    e(f's_lshr_b32 {sKH}, {sW}, 1\ns_and_b32 {sMH}, {sW}, 1')
    e(f's_lshl_b32 {sBWO}, {sDT}, 7\ns_lshl_b32 {sBW1}, {sFT}, 7\ns_lshl_b32 {sBW2}, {sSB}, 7')
    e(f'v_lshrrev_b32 {vT0}, 3, {vL}\ns_lshl_b32 {sT0}, {sW}, 3\nv_add_u32 {vT0}, {sT0}, {vT0}')
    e(f'v_and_b32 {vT1}, 7, {vL}\nv_lshlrev_b32 {vT2}, 1, {vG}\nv_xor_b32 {vT1}, {vT1}, {vT2}\nv_lshlrev_b32 {vT1}, 4, {vT1}')
    e(f'v_lshl_add_u32 {vDO}, {vT0}, 10, {vT1}')
    e(f'v_and_b32 {vT1}, 7, {vL}\nv_and_b32 {vT2}, 1, {vG}\nv_lshlrev_b32 {vT2}, 2, {vT2}\nv_xor_b32 {vT1}, {vT1}, {vT2}\nv_lshlrev_b32 {vT1}, 4, {vT1}')
    e(f'v_lshl_add_u32 {vD2}, {vT0}, {7 if RP else 12}, {vT1}')
    e(f's_mul_i32 {sW2P}, {sSB}, {1792*128}\ns_add_u32 {sW2P}, {sW2P}, {WS_W2}')
    e(f'v_mul_u32_u24 {vD1}, 3584, {vT0}\nv_add_u32 {vD1}, {vD1}, {vT1}')
    for i in range(4): e(f'v_mov_b32 {v(ONES + i)}, 0x3f803f80')
    e('s_waitcnt lgkmcnt(0)')
    e(f's_mul_i32 {sTAG}, {sTAG}, 1664525\ns_add_u32 {sTAG}, {sTAG}, 1013904223')
    e(f'v_mov_b32 {vTAG}, {sTAG}')
    Lx = e.label('xcc')
    au = e.auto; e.auto = 0
    e(f's_cmp_lg_u32 {sW}, 0\ns_cbranch_scc1 {Lx}')
    e(f's_add_u32 {sT0}, {sTAG}, {sXM}\nv_mov_b32 {vT1}, {sT0}\ns_lshl_b32 {sT0}, {sX}, 7\ns_lshl_b32 {sT1}, {sI}, 2\ns_add_u32 {sT0}, {sT0}, {sT1}\ns_add_u32 {sT0}, {sT0}, {WS_XCC}')
    e(f'v_mov_b32 {vT0}, 0\ns_mov_b64 exec, 1')
    e(f'buffer_store_dword {vT1}, {vT0}, {srd(WS)}, {sT0} offen sc1', None); e.vm.pop()
    e(f's_mov_b64 exec, -1\n{Lx}:')
    e.auto = au
    e(f'v_lshrrev_b32 {vT0}, 5, {vL}\nv_lshlrev_b32 {vT0}, 2, {vT0}\nv_lshrrev_b32 {vT1}, 2, {vL}\nv_and_b32 {vT1}, 3, {vT1}\nv_add_u32 {vT0}, {vT0}, {vT1}\nv_lshlrev_b32 {vT0}, 7, {vT0}')
    e(f'v_lshrrev_b32 {vT1}, 1, {vT1}\nv_lshl_add_u32 {vT0}, {vT1}, 6, {vT0}\nv_and_b32 {vT1}, 1, {vG}\nv_lshl_add_u32 {vT0}, {vT1}, 5, {vT0}\nv_and_b32 {vT1}, 3, {vL}\nv_lshl_add_u32 {vT0}, {vT1}, 3, {vT0}')
    e(f's_lshl_b32 {sT0}, {sKH}, 6\nv_xor_b32 {vT0}, {sT0}, {vT0}\ns_lshl_b32 {sT0}, {sKH}, 12\nv_add_u32 v{vB[0]}, {sT0}, {vT0}\nv_xor_b32 v{vB[1]}, 64, v{vB[0]}')
    for st in (1, 2):
        for sg in (0, 1): e(f'v_add_u32 v{vB[st*2+sg]}, {st*12*SLOT}, v{vB[sg]}')
    e(f'v_and_b32 {vT0}, 1, {vJ}\nv_cmp_eq_u32 {sPAR}, 1, {vT0}')
    e(f'v_lshl_add_u32 {vT1}, {vG}, 2, {vT0}')
    e(f'v_cmp_le_u32 {sCUR0}, {vT1}, {vJ}\nv_add_u32 {vT1}, 2, {vT1}\nv_cmp_le_u32 {sCUR1}, {vT1}, {vJ}')
    e(f's_lshl_b32 {sWT}, {sI}, 2\ns_add_u32 {sWT}, {sWT}, {sW}\ns_lshr_b32 {sT0}, {sWT}, 6\ns_and_b32 {sWT}, {sWT}, 63\ns_mul_i32 {sWT}, {sWT}, {(16 // P("ntouch", 8))*3584}')
    e(f's_mul_i32 {sT0}, {sT0}, {1024*3584}\ns_add_u32 {sWT}, {sWT}, {sT0}\ns_lshr_b32 {sT0}, {sX}, 1\ns_mul_i32 {sT0}, {sT0}, 896\ns_add_u32 {sWT}, {sWT}, {sT0}')
    e(f's_lshl_b32 {sOB}, {sTB}, 3\ns_lshl_b32 {sT0}, {sW}, 1\ns_add_u32 {sOB}, {sOB}, {sT0}\ns_lshl_b32 {sOB}, {sOB}, 4\ns_add_u32 {sOB}, {sOB}, {sP}\ns_lshl_b32 {sOB}, {sOB}, 10')
    e(f'v_mov_b32 {vT2}, 0x0c0c0c0c')
    for u, (sc, sp, cur) in enumerate(((SELC0, SELP0, sCUR0), (SELC1, SELP1, sCUR1))):
        lo = 0x0c0c0000 | ((2*u+1) << 8) | (2*u)
        hi = ((2*u+1) << 24) | ((2*u) << 16) | 0x0c0c
        e(f'v_mov_b32 {vT0}, {hx(lo)}\nv_mov_b32 {vT1}, {hx(hi)}\nv_cndmask_b32 {vT0}, {vT0}, {vT1}, {sPAR}')
        e(f'v_cndmask_b32 {sc}, {vT2}, {vT0}, {cur}\nv_cndmask_b32 {sp}, {vT0}, {vT2}, {cur}')
    e(f's_or_b32 {sT0}, {sTB}, {sW}\ns_cmp_eq_u32 {sT0}, 0\ns_cselect_b32 {sT0}, {hx(f2u(-1e30))}, 0')
    for i in range(4): e(f'v_mov_b32 {v(NEG + i)}, {sT0}')

XF = 136
ACC1 = 64
def acc1(t, c): return ACC1 + (t * 6 + c) * 4
HA, HB = 112, 116
FSR = 120
PSR = 132

def p1_tr(dst, kt, seg, h, avs):
    slot = (kt >> 1) * 3 + seg
    st = slot // 12
    imm = (slot - st * 12) * SLOT + (kt & 1) * 2048 + h * 256
    return f'ds_read_b64_tr_b16 {dst}, v{avs[st]} offset:{imm}'

def ln_stats(vs, vq, vr, vn, t0, double=False):
    e(f'v_mul_f32 {vs}, {hx(f2u(1/512))}, {vs}')
    e(f'v_mul_f32 {vq}, {hx(f2u(1/512))}, {vq}')
    e(f'v_fma_f32 {vq}, -{vs}, {vs}, {vq}')
    e(f'v_max_f32 {vq}, 0, {vq}')
    e(f'v_add_f32 v{t0}, {hx(f2u(1e-5))}, {vq}')
    e(f'v_rsq_f32 {vr}, v{t0}')
    if double:
        e(f'v_mul_f32 v{t0}, {vr}, {vr}')
        e(f'v_mul_f32 v{t0}, v{t0}, {vq}')
        e(f'v_add_f32 v{t0}, {hx(f2u(1e-5))}, v{t0}')
        e(f'v_rsq_f32 v{t0}, v{t0}')
        e(f'v_mul_f32 {vr}, {vr}, v{t0}')
    e(f'v_mul_f32 {vn}, {vs}, {vr}')
    e(f'v_sub_f32 {vn}, 0, {vn}')

def warm_touch():
    NTCH = P('ntouch', 8)
    rows = 16 // NTCH
    def w1t(q):
        blk = NTCH - 1 - q
        e(f's_add_u32 {sT4}, {sWT}, {blk*(1024//NTCH)*3584}')
        if rows < 8: e(f's_mov_b64 exec, {hx((1 << (8*rows)) - 1) if rows < 4 else "0xffffffff"}' if rows < 4 else 's_mov_b32 exec_hi, 0')
        e(f'buffer_load_dword a250, v{vA[10]}, {srd(W1)}, {sT4} offen', 'pf')
        if rows < 8: e('s_mov_b64 exec, -1')
    return [lambda q=q: w1t(q) for q in range(NTCH)]

def spin_check(tag, loads, bad_code, limit=30000):
    L = e.label('chk'); Ld = L + '_d'
    e.wait_vm(tag)
    e(f's_mov_b32 {sCNT}, {limit}')
    e(f'{L}:')
    e(bad_code)
    e(f's_cbranch_vccz {Ld}')
    for ld in loads:
        e(ld, None); e.vm.pop()
    e(f's_waitcnt vmcnt(0)\ns_sub_u32 {sCNT}, {sCNT}, 1\ns_cmp_lg_u32 {sCNT}, 0\ns_cbranch_scc1 {L}')
    e(f'{Ld}:')

def phase1(l):
    first = l == 0
    def addr_setup():
        e(f'v_lshrrev_b32 {vT0}, 2, {vL}\nv_and_b32 {vT0}, 3, {vT0}\nv_lshl_add_u32 {vT0}, {vG}, 3, {vT0}\nv_lshlrev_b32 {vT0}, 6, {vT0}')
        e(f'v_and_b32 {vT1}, 3, {vL}\nv_lshl_add_u32 {vT0}, {vT1}, 3, {vT0}')
        e(f'v_and_b32 {vT1}, 1, {vG}\nv_lshl_add_u32 v{vA[0]}, {vT1}, 5, {vT0}')
        e(f'v_add_u32 v{vA[1]}, {12*SLOT}, v{vA[0]}')
        e(f'v_xor_b32 v{vA[2]}, 32, v{vA[0]}\nv_xor_b32 v{vA[3]}, 32, v{vA[1]}')
        e(f'v_lshrrev_b32 {vT0}, 3, {vL}\nv_mul_u32_u24 {vT2}, 3584, {vT0}\nv_and_b32 {vT1}, 7, {vL}\nv_min_u32 v{vA[10]}, 6, {vT1}\nv_lshl_add_u32 v{vA[10]}, v{vA[10]}, 7, {vT2}')
        e(f'v_lshlrev_b32 {vT0}, 14, {vT0}\nv_lshl_add_u32 v{vA[11]}, {vT1}, 7, {vT0}')
        e(f's_lshl_b32 {sT0}, {sMH}, 5\nv_xor_b32 {vT2}, {sT0}, v{vA[0]}\nv_xor_b32 {vT3}, {sT0}, v{vA[1]}')
        e(f's_lshl_b32 {sT0}, {sKH}, 12\ns_add_u32 {sT0}, {sT0}, {SLOT}\nv_add_u32 v{vA[4]}, {sT0}, {vT2}\nv_add_u32 v{vA[5]}, {sT0}, {vT3}')
        if first:
            e(f'v_and_b32 {vT0}, 7, {vJ}\nv_xor_b32 {vT0}, {vT0}, {vG}\nv_lshlrev_b32 {vT0}, 4, {vT0}\nv_lshl_add_u32 {vT0}, {vJ}, 7, {vT0}')
            e(f'v_add_u32 v{vA[6]}, {sXB}, {vT0}\nv_xor_b32 v{vA[7]}, 64, v{vA[6]}')
            e(f'v_add_u32 v{vA[8]}, {HALO}, {vT0}\nv_xor_b32 v{vA[9]}, 64, v{vA[8]}')
            e(f'v_lshrrev_b32 {vT0}, 3, {vL}\nv_lshlrev_b32 {vT0}, 11, {vT0}\nv_and_b32 {vT1}, 7, {vL}\nv_lshl_add_u32 {vT0}, {vT1}, 4, {vT0}\nv_add_u32 {vT0}, {HALO}, {vT0}')
        else:
            e(f'v_add_u32 v{vA[8]}, {HALO}, {vL16}\nv_add_u32 v{vA[9]}, 1024, v{vA[8]}')
            e(f's_lshl_b32 {sT0}, {sW}, 12\nv_add_u32 {vT3}, {sT0}, v{vA[8]}')
            e(f'v_lshlrev_b32 v{vA[6]}, 4, {vJ}')
            e(f'v_lshlrev_b32 {vT0}, 8, {vL}\nv_add_u32 {vT0}, {HALO}, {vT0}')
        e(f'ds_write_b128 {vT0}, {v(ONES, 4)}', 'ones')
    def bases():
        e(f's_lshl_b32 {sXA}, {sTB}, 3\ns_lshl_b32 {sT1}, {sW}, 1\ns_add_u32 {sXA}, {sXA}, {sT1}\ns_lshl_b32 {sXA}, {sXA}, 14')
        e(f's_lshl_b32 {sFSB}, {sTB}, 4\ns_add_u32 {sFSB}, {sFSB}, {sP}\ns_lshl_b32 {sFSB}, {sFSB}, 3\ns_add_u32 {sFSB}, {sFSB}, {sT1}')
        if first:
            e(f's_lshl_b32 {sXH}, {sTB}, 3\ns_sub_u32 {sXH}, {sXH}, 1\ns_max_i32 {sXH}, {sXH}, 0\ns_lshl_b32 {sXH}, {sXH}, 14')
            e(f's_mul_i32 {sXB}, {sW}, {3*SLOT}\ns_add_u32 {sXB}, {sXB}, {XS}')
        else:
            e(f's_add_u32 {sXA}, {sXA}, {WS_X2}')
            e(f's_lshl_b32 {sXH}, {sTB}, 14\ns_add_u32 {sXH}, {sXH}, {WS_XH}\ns_cmp_eq_u32 {sTB}, 0\ns_cselect_b32 {sXH}, {WS_X2}, {sXH}')
    if not first:
        addr_setup(); bases()
        e.drain()
        e(f's_lshl_b32 {sT4}, {sFSB}, 7\ns_add_u32 {sT4}, {sT4}, {WS_PS}')
        poll(WS_FLAG(0, 3), f's_lshl_b32 {sT0}, {sTB}, 4', 16)
    stamp()
    if first: cstamp(62); bases()

    def fs_store(R, lanes, shift):
        e(f'v_mov_b32 v{R+1}, {vTAG}\nv_mov_b32 v{R+3}, {vTAG}\nv_lshrrev_b32 {vT1}, {shift}, {vL}\nv_lshlrev_b32 {vT1}, 4, {vT1}')
        e(f's_lshl_b32 {sT4}, {sFSB}, 4\ns_add_u32 {sT4}, {sT4}, {WS_FS(l)}')
        e(lanes)
        e(f'buffer_store_dwordx4 {v(R, 4)}, {vT1}, {srd(WS)}, {sT4} offen sc1', 'fst')
        e('s_mov_b64 exec, -1')

    sched = {}
    if first:
        def xdma(kk, i):
            e(f's_lshl_b32 {sT3}, {sKX[kk]}, 7\ns_add_u32 {sT3}, {sT3}, {sXA}')
            if i: e(f's_add_u32 {sT3}, {sT3}, {8192*i}')
            e(f's_add_u32 m0, {sXB}, {(kk % 3)*SLOT + i*1024}')
            e(f'buffer_load_dwordx4 {vXR}, {srd(X0)}, {sT3} offen lds', ('x', kk))
        def frag(t, kt): return XB + (kt & 1) * 8 + 4 * t
        def halo_dma(n):
            kkl, i = n >> 1, n & 1
            e(f's_lshl_b32 {sT4}, {sW}, 1\ns_add_u32 {sT4}, {sT4}, {sROT}\ns_add_u32 {sT4}, {sT4}, {kkl}\ns_and_b32 {sT4}, {sT4}, 7\ns_lshl_b32 {sT4}, {sT4}, 7')
            e(f's_add_u32 {sT4}, {sT4}, {sXH}\ns_add_u32 {sT4}, {sT4}, {8192*i}')
            e(f's_lshl_b32 {sT3}, {sW}, 12\ns_add_u32 m0, {sT3}, {HALO + kkl*2048 + i*1024}')
            if i == 0: e('s_mov_b32 exec_lo, 0xffffff00')
            e(f'buffer_load_dwordx4 {vXR}, {srd(X0)}, {sT4} offen lds', 'halo')
            if i == 0: e('s_mov_b32 exec_lo, -1')
        if P('sq0', 1):
            e(f's_lshl_b32 {sT4}, {sI}, 2\ns_add_u32 {sT4}, {sT4}, {sW}\ns_mul_i32 {sT4}, {sT4}, {12*1024}\ns_add_u32 {sT4}, {sT4}, 384\nv_lshlrev_b32 {vT1}, 10, {vL}\ns_mov_b64 exec, 0xfff')
            e(f'buffer_load_dword a246, {vT1}, {srd(WQKV)}, {sT4} offen', 'pf')
            e('s_mov_b64 exec, -1')
        RW = 160
        e(f's_lshl_b32 {sT4}, {sFSB}, 10')
        for i in range(2): e(f'buffer_load_dwordx4 {v(RW + 4*i, 4)}, {vL16}, {srd(X0)}, {sT4} offen offset:{1024*i}', 'rw')
        seq = []
        for kk in range(3):
            seq += [lambda kk=kk, i=i: xdma(kk, i) for i in range(4)]
            seq += [lambda kk=kk, seg=seg: dma('qkv', kk*3+seg, kk*3+seg, ('qkv', kk)) for seg in range(3)]
        wq = [lambda kk=kk, seg=seg: dma('qkv', kk*3+seg, kk*3+seg, ('qkv', kk)) for kk in range(3, 8) for seg in range(3)]
        seq += wq[:6] + [lambda n=n: halo_dma(n) for n in range(4)] + wq[6:]
        n0, n1 = P('b0', 9), P('b1', 21)
        for f in seq[:n0]: f()
        e.side = seq[n0:n1]
        e.auto = P('auto0', 12)
        late_setup()
        addr_setup()
        e.wait_vm('rw')
        A_ = 168
        for r in range(4):
            for i in range(2):
                x = f'v{RW + 4*i + r}'
                e(f'v_dot2_f32_bf16 v{A_+i}, {x}, {v(ONES)}, {"0" if r == 0 else f"v{A_+i}"}')
                e(f'v_dot2_f32_bf16 v{A_+2+i}, {x}, {x}, {"0" if r == 0 else f"v{A_+2+i}"}')
        e(f'v_permlane32_swap_b32 v{A_}, v{A_+1}\nv_permlane32_swap_b32 v{A_+2}, v{A_+3}')
        e(f'v_add_f32 v{A_}, v{A_}, v{A_+1}\nv_add_f32 v{A_+2}, v{A_+2}, v{A_+3}')
        e(f'v_permlane16_swap_b32 v{A_}, v{A_+2}\nv_add_f32 v{A_}, v{A_}, v{A_+2}')
        for sh in (8, 4, 2, 1): e(f'v_add_f32_dpp v{A_}, v{A_}, v{A_} row_ror:{sh} row_mask:0xf bank_mask:0xf')
        e(f'v_mov_b32 v{A_+1}, v{A_}\nv_permlane16_swap_b32 v{A_}, v{A_+1}')
        ln_stats(f'v{A_}', f'v{A_+1}', f'v{A_+4}', f'v{A_+6}', A_+2)
        e.auto = 0
        fs_store(A_+4, 's_mov_b32 exec_lo, 1\ns_mov_b32 exec_hi, 1', 5)
        e.drain()
        if 'p1st' in EXP: stamp()
        for kk in range(3, 8):
            sched.setdefault(2*(kk-3)+1, []).extend([lambda kk=kk, i=i: xdma(kk, i) for i in (0, 1)])
            sched.setdefault(2*(kk-3)+2, []).extend([lambda kk=kk, i=i: xdma(kk, i) for i in (2, 3)])
        loads = seq[n1:]
        def res_load(ct):
            if ct == 0:
                e(f's_lshl_b32 {sT2}, {sSB}, 2\ns_add_u32 {sT2}, {sT2}, {sW}\ns_lshl_b32 {sT2}, {sT2}, 14\ns_add_u32 {sT2}, {sT2}, {sBWO}')
                e(f'v_lshlrev_b32 {vT0}, 10, {vJ}\nv_lshl_add_u32 {vT0}, {vG}, 3, {vT0}')
            e(f'buffer_load_dwordx2 {v(CARRY + 2*ct, 2)}, {vT0}, {srd(X0)}, {sT2} offen offset:{ct*32}', 'res')
        xl = f'buffer_load_dword {vP1}, {vP0}, {srd(WS)}, {sT1} offen sc1'
        def xcc_load():
            e(f'v_and_b32 {vP0}, 31, {vL}\nv_lshlrev_b32 {vP0}, 2, {vP0}\ns_lshl_b32 {sT1}, {sX}, 7\ns_add_u32 {sT1}, {sT1}, {WS_XCC}')
            e(xl, 'xcc')
        def xcc_check():
            spin_check('xcc', [xl], f'v_sub_u32 {vT1}, {vP1}, {vTAG}\nv_cmp_lt_u32 vcc, 15, {vT1}')
            e(f'v_cmp_ne_u32 vcc, {sXM}, {vT1}\ns_cmp_eq_u64 vcc, 0\ns_cselect_b32 {sFAST}, 1, 0')
        sched.setdefault(6, []).append(xcc_load)
        sched.setdefault(11, []).append(xcc_check)
        if RP:
            def rp_load(q):
                if q == 0: e(f's_lshl_b32 {sC1}, {sX}, 5\ns_add_u32 {sC1}, {sC1}, {sI}\ns_lshl_b32 {sC1}, {sC1}, 2\ns_add_u32 {sC1}, {sC1}, {sW}\ns_mul_i32 {sC1}, {sC1}, 7168')
                if q == 4: e(f's_add_u32 {sC1}, {sC1}, 4096')
                e(f'buffer_load_dwordx4 {a(112 + 4*q, 4)}, {vL16}, {srd(W2)}, {sC1} offen offset:{(q % 4)*1024}', 'pf')
            for q in range(7): sched.setdefault(P('rpstep', 12) + q // 2, []).append(lambda q=q: rp_load(q))
        if P('slowcol', 1):
            def sc_touch():
                e(f's_lshl_b32 {sT4}, {sI}, 2\ns_add_u32 {sT4}, {sT4}, {sW}\ns_and_b32 {sT3}, {sX}, 1\ns_lshl_b32 {sT3}, {sT3}, 7\ns_add_u32 {sT4}, {sT4}, {sT3}\ns_mul_i32 {sT4}, {sT4}, {7*4096}')
                e(f's_lshr_b32 {sT3}, {sX}, 1\ns_lshl_b32 {sT3}, {sT3}, 10\ns_add_u32 {sT4}, {sT4}, {sT3}\ns_add_u32 {sT4}, {sT4}, 384\nv_lshlrev_b32 {vT1}, 12, {vL}\ns_mov_b64 exec, 0x7f')
                e(f'buffer_load_dword a251, {vT1}, {srd(W2)}, {sT4} offen', 'pf')
                e('s_mov_b64 exec, -1')
            sched.setdefault(P('scstep', 15), []).append(sc_touch)
        if P('wotouch', 7):
            def wo_touch():
                e(f's_lshl_b32 {sT4}, {sI}, 2\ns_add_u32 {sT4}, {sT4}, {sW}\ns_lshl_b32 {sT4}, {sT4}, 12\nv_lshlrev_b32 {vT1}, 7, {vL}\ns_mov_b32 exec_hi, 0')
                e(f'buffer_load_dword a245, {vT1}, {srd(WO)}, {sT4} offen', 'pf')
                e('s_mov_b64 exec, -1')
            sched.setdefault(P('wotouch', 7), []).append(wo_touch)
        ts = P('tstep0', 8)
        per_step = P('ps0', 5)
        hb = P('hb0', 8)
        fsl = P('fsl0', 11)
    else:
        def frag(t, kt): return XF + ((kt % 12) * 2 + t) * 4
        def xload(kt, t):
            if t == 0 and kt % 2 == 0: e(f's_lshl_b32 {sXB}, {sKX[kt >> 1]}, 11\ns_add_u32 {sXB}, {sXB}, {sXA}\ns_add_u32 {sT2}, {sXB}, 16384')
            e(f'buffer_load_dwordx4 {v(frag(t, kt), 4)}, {vL16}, {srd(WS)}, {(sXB, sT2)[t]} offen offset:{(kt & 1)*1024} sc1', ('x', kt))
        hl = f'buffer_load_dword {vP1}, {vP0}, {srd(WS)}, {sT1} offen sc1'
        def hflag_load():
            e(f'v_min_u32 {vP0}, 7, {vL}\nv_mul_u32_u24 {vP0}, {FSTR}, {vP0}')
            e(f's_mul_i32 {sT1}, {sTB}, {8*FSTR}\ns_add_u32 {sT1}, {sT1}, {WS_FH}\ns_cmp_eq_u32 {sTB}, 0\ns_cselect_b32 {sT1}, {WS_FLAG(0, 3)}, {sT1}')
            e(hl, 'hf')
        def halo_load(n):
            if n == 0: spin_check('hf', [hl], f'v_cmp_ne_u32 vcc, {vP1}, {vTAG}')
            if n % 2 == 0:
                e(f's_lshl_b32 {sT4}, {sW}, 1\ns_add_u32 {sT4}, {sT4}, {sROT}\ns_add_u32 {sT4}, {sT4}, {n >> 1}\ns_and_b32 {sT4}, {sT4}, 7\ns_lshl_b32 {sT4}, {sT4}, 11')
                e(f's_add_u32 {sT1}, {sT4}, {sXH}')
            e(f'buffer_load_dwordx4 {a(96 + 4*n, 4)}, {vL16}, {srd(WS)}, {sT1} offen offset:{(n & 1)*1024} sc1', 'halo')
        e(f'buffer_load_dwordx4 {v(PSR, 4)}, v{vA[6]}, {srd(WS)}, {sT4} offen sc1', 'ps')
        loads = [lambda kt=kt, t=t: xload(kt, t) for kt in range(16) for t in (0, 1)]
        lead = P('p1lead1', 4) * 2
        for f in loads[:lead]: f()
        loads = loads[lead:]
        Lh = e.label('hf')
        e(f's_and_b32 {sT0}, {sSB}, 1\ns_cmp_eq_u32 {sT0}, 0\ns_cbranch_scc1 {Lh}')
        put_flag(WS_FH, f's_lshr_b32 {sT0}, {sSB}, 1\ns_add_u32 {sT0}, {sT0}, 1\ns_lshl_b32 {sT0}, {sT0}, 3\ns_add_u32 {sT0}, {sT0}, {sDT}', False)
        e(f'{Lh}:')
        e.wait_vm('ps')
        e(f'v_add_f32 v{PSR}, v{PSR}, v{PSR+2}\nv_add_f32 v{PSR+1}, v{PSR+1}, v{PSR+3}')
        for m_ in ('quad_perm:[1,0,3,2]', 'quad_perm:[2,3,0,1]', 'row_half_mirror'):
            for i in range(2): e(f'v_add_f32_dpp v{PSR+i}, v{PSR+i}, v{PSR+i} {m_} row_mask:0xf bank_mask:0xf')
        ln_stats(f'v{PSR}', f'v{PSR+1}', f'v{FSR}', f'v{FSR+2}', PSR+2)
        fs_store(FSR, 's_mov_b64 exec, 0x101', 3)
        hs0 = P('hstep', 5)
        sched[hs0] = [hflag_load]
        sched[hs0 + 2] = [lambda n=n: halo_load(n) for n in range(4)]
        hb = hs0 + 5
        for p in range(NWE): sched.setdefault(12 + p // 2, []).append(lambda p=p: dma('wo', p, wo_slot(p), 'pf'))
        ts = P('tstep1', 8)
        per_step = 4
        fsl = P('fsl1', 12)
    fl = [f'buffer_load_dwordx4 {v(FSR + 4*i, 4)}, {vP0}, {srd(WS)}, {(sT1, sT1, sFSB)[i]} offen offset:{(0, 256, 0)[i]} sc1' for i in range(3)]
    def fs_loads():
        e(f'v_lshlrev_b32 {vP0}, 4, {vJ}\ns_lshl_b32 {sT1}, {sTB}, 11\ns_sub_u32 {sFSB}, {sT1}, 256\ns_max_i32 {sFSB}, {sFSB}, 0\ns_add_u32 {sFSB}, {sFSB}, {WS_FS(l)}')
        e(f's_lshl_b32 {sT4}, {sW}, 9\ns_add_u32 {sT1}, {sT1}, {sT4}\ns_add_u32 {sT1}, {sT1}, {WS_FS(l)}')
        for f in fl: e(f, 'fs')
    sched.setdefault(fsl, []).append(fs_loads)
    if P('warm', 1):
        for i, f in enumerate(warm_touch()): sched.setdefault(min(15, ts + i), []).append(f)
    if P('pretouch', 1):
        def pt_o():
            e(f's_add_u32 {sT4}, {sOB}, {WS_O(l)}\ns_mov_b64 exec, 0xffff')
            e(f'buffer_load_dword a249, v{vA[11]}, {srd(WS)}, {sT4} offen', 'pf')
            e('s_mov_b64 exec, -1')
        def pt_s():
            e(f's_lshl_b32 {sT4}, {sSB}, 2\ns_add_u32 {sT4}, {sT4}, {sW}\ns_lshl_b32 {sT4}, {sT4}, 3\ns_add_u32 {sT4}, {sT4}, {sDT}\ns_lshl_b32 {sT4}, {sT4}, 8\ns_add_u32 {sT4}, {sT4}, {WS_STAT(l)}')
            e('s_mov_b64 exec, 3')
            e(f'buffer_load_dword a248, v{vA[11]}, {srd(WS)}, {sT4} offen', 'pf')
            e(f's_lshl_b32 {sT4}, {sTB}, 4\ns_add_u32 {sT4}, {sT4}, {sP}\ns_mul_i32 {sT4}, {sT4}, {FSTR}\ns_add_u32 {sT4}, {sT4}, {WS_FLAG(l, 0)}\ns_mov_b64 exec, 1')
            e(f'buffer_load_dword a247, v{vA[11]}, {srd(WS)}, {sT4} offen', 'pf')
            e('s_mov_b64 exec, -1')
        sched.setdefault(ts, []).insert(0, pt_o)
        sched.setdefault(ts + 1, []).insert(0, pt_s)

    NB = 12
    DW = P('p1dw', 4)
    def wreads(ph):
        kt, c = divmod(ph, 6)
        seg, ct = c >> 1, c & 1
        return [p1_tr(a((ph % NB)*4 + 2*h, 2), kt, seg, h, (vA[2*ct], vA[2*ct+1])) for h in (0, 1)]
    def xreads(kt):
        return [f'ds_read_b128 {v(frag(t, kt), 4)}, v{vA[6 + (kt & 1)]} offset:{((kt >> 1) % 3)*SLOT + t*2048}' for t in (0, 1)]
    def hbuf(hk): return 48 + (hk % 4) * 12
    def hreads(hk):
        b = hbuf(hk)
        out = [f'ds_read_b128 {a(b, 4)}, v{vA[8 + (hk & 1)]} offset:{(hk >> 1)*2048}']
        out += [p1_tr(a(b + 4 + 2*h, 2), hk, 0, h, (vA[4], vA[5])) for h in (0, 1)]
        if first: out += [p1_tr(a(b + 8 + 2*h, 2), hk, 0, h, (24, 25)) for h in (0, 1)]
        return out
    def gate(kk):
        if first:
            e.wait_vm(('qkv', kk)); e('s_barrier')
    if first:
        e.wait_vm(('x', 0))
        for r in xreads(0): e(r, ('xf', 0))
    gate(0)
    for ph in range(DW):
        for r in wreads(ph): e(r, ('f', ph))
    slots = list(range(hb * 6, 96))
    hpos = {slots[int(i * len(slots) / 18)]: i for i in range(18)}
    lpos = [int(i * 12 / per_step) for i in range(per_step)]
    for kt in range(16):
        n = 0
        must = sched.pop(kt, [])
        if 'p1st' in EXP and kt % 2 == 0: stamp()
        def slot_ops():
            nonlocal n
            if n in lpos:
                if must: must.pop(0)()
                elif loads: loads.pop(0)()
            n += 1
        if kt == hb:
            e.wait_vm('halo')
            if not first:
                e('s_mov_b32 exec_lo, 0xfffefffe\ns_mov_b32 exec_hi, 0xfffefffe')
                for i in range(4): e(f'ds_write_b128 {vT3}, {a(96 + 4*i, 4)} offset:{1024*i}', 'hw')
                e('s_mov_b64 exec, -1')
                e.wait_lg('hw')
            e('s_barrier')
        if first:
            e.wait_both(('x', (kt+1) >> 1) if kt % 2 == 1 and kt < 15 else None, ('xf', kt))
        else: e.wait_vm(('x', kt))
        for c in range(6):
            ph = kt * 6 + c
            nx = ph + DW
            if nx < 96 and nx % 12 == 0: gate(nx // 12)
            e.wait_lg(('f', ph))
            for t in (0, 1):
                ac = v(acc1(t, c), 4)
                e(f'v_mfma_f32_16x16x32_bf16 {ac}, {a((ph % NB)*4, 4)}, {v(frag(t, kt), 4)}, {"0" if kt == 0 else ac}')
                if nx < 96: e(wreads(nx)[t], ('f', nx))
                if first and kt < 15 and c == 0: e(xreads(kt+1)[t], ('xf', kt+1))
                slot_ops()
            if ph in hpos:
                i = hpos[ph]
                assert not first or i >= 16 or (i >> 1) <= (ph + DW) // 12
                hk = i - 2
                rd = hreads(i) if i < 16 else []
                if hk >= 0:
                    e.wait_lg(('h', hk))
                    b = hbuf(hk)
                    e(f'v_mfma_f32_16x16x32_bf16 {v(HA,4)}, {a(b+4,4)}, {a(b,4)}, {"0" if hk == 0 else v(HA,4)}')
                    for r in rd[:2]: e(r, ('h', i))
                    rd = rd[2:]
                    if first: e(f'v_mfma_f32_16x16x32_bf16 {v(HB,4)}, {a(b+8,4)}, {a(b,4)}, {"0" if hk == 0 else v(HB,4)}')
                for r in rd: e(r, ('h', i))
        while must: must.pop(0)()
    assert not sched
    while loads: loads.pop(0)()
    stamp()
    e(f's_lshl_b32 {sT0}, {sW}, 11\ns_add_u32 {sT0}, {sT0}, {VT}\nv_lshlrev_b32 {vT2}, 6, {vJ}\nv_lshl_add_u32 {vT2}, {vG}, 3, {vT2}\nv_add_u32 {vT0}, {sT0}, {vT2}')
    e(f'v_lshrrev_b32 {vT3}, 2, {vL}\nv_lshlrev_b32 {vT3}, 6, {vT3}\nv_and_b32 {vT1}, 3, {vL}\nv_lshl_add_u32 {vT3}, {vT1}, 3, {vT3}\nv_add_u32 {vT3}, {sT0}, {vT3}')
    e(f's_add_u32 {sT0}, {sM0}, {KX}\nv_add_u32 {vT1}, {sT0}, {vL8}')
    e(f's_lshl_b32 {sT0}, {sMH}, 9\ns_add_u32 {sT0}, {sT0}, {KX}\ns_lshl_b32 {sT2}, {sMH}, 5\ns_add_u32 {sT2}, {sT2}, {VT}')
    e(f's_cmp_lg_u32 {sKH}, 0\ns_cselect_b32 {sT0}, {sT2}, {sT0}\ns_cselect_b64 vcc, -1, 0\nv_cndmask_b32 {vT2}, {vL8}, {vT2}, vcc\nv_add_u32 {vT2}, {sT0}, {vT2}')
    if first:
        e(f's_lshl_b32 {sT0}, {sW}, 6\ns_add_u32 {sT0}, {sT0}, {CSX + 128}\ns_lshl_b32 {sT2}, {sMH}, 6\ns_add_u32 {sT2}, {sT2}, {CSX}')
        e(f'v_lshlrev_b32 v136, 4, {vG}\nv_add_u32 v137, {sT0}, v136\nv_add_u32 v138, {sT2}, v136\nv_add_u32 v136, {CSX}, v136')
        e('s_barrier')
        e('s_mov_b32 exec_lo, 0x00010001\ns_mov_b32 exec_hi, 0x00010001')
        e(f'ds_write_b128 v137, {v(HA,4)}\nds_write_b128 v138, {v(HB,4)}')
        e('s_mov_b64 exec, -1\ns_waitcnt lgkmcnt(0)\ns_barrier')
        for c in range(6): e(f'ds_read_b128 {v(CS + 4*c, 4)}, v136 offset:{64*c}', 'csr')
        def res_dma(i):
            e(f's_lshl_b32 {sT4}, {sSB}, 2\ns_add_u32 {sT4}, {sT4}, {sW}\ns_lshl_b32 {sT4}, {sT4}, 14\ns_add_u32 {sT4}, {sT4}, {sBWO}\ns_add_u32 {sT4}, {sT4}, {8192*i}')
            e(f's_lshl_b32 {sT3}, {sW}, 11\ns_add_u32 m0, {sT3}, {SC + 1024*i}')
            e(f'buffer_load_dwordx4 {vXR}, {srd(X0)}, {sT4} offen lds', 'pf')
        e(f'v_lshrrev_b32 v139, 3, {vL}\nv_and_b32 {vXR}, 7, {vL}\nv_lshlrev_b32 {vXR}, 4, {vXR}\nv_lshl_add_u32 {vXR}, v139, 10, {vXR}')
        for p in range(NWE): q_dma('wo', p, wo_slot(p))
        for i in range(2): e.side.append(lambda i=i: res_dma(i))
    spin_check('fs', fl, f'v_xor_b32 v{PSR}, v{FSR+1}, {vTAG}\nv_xor_b32 v{PSR+1}, v{FSR+3}, {vTAG}\nv_xor_b32 v{PSR+2}, v{FSR+5}, {vTAG}\nv_xor_b32 v{PSR+3}, v{FSR+7}, {vTAG}\n'
               f'v_or3_b32 v{PSR}, v{PSR}, v{PSR+1}, v{PSR+2}\nv_xor_b32 v{PSR+1}, v{FSR+9}, {vTAG}\nv_xor_b32 v{PSR+2}, v{FSR+11}, {vTAG}\n'
               f'v_or3_b32 v{PSR}, v{PSR}, v{PSR+3}, v{PSR+1}\nv_or_b32 v{PSR}, v{PSR}, v{PSR+2}\nv_cmp_ne_u32 vcc, 0, v{PSR}')
    QP = 176
    KP = 184
    VP = 196
    VW = 208
    def norm(ac, st, cs, dst):
        for i in (0, 2): e(f'v_pk_mul_f32 {v(ac+i,2)}, {v(ac+i,2)}, {v(st,2)} op_sel_hi:[1,0]')
        for i in (0, 2): e(f'v_pk_fma_f32 {v(ac+i,2)}, {v(cs+i,2)}, {v(st+2,2)}, {v(ac+i,2)} op_sel_hi:[1,0,1]')
        e(f'v_cvt_pk_bf16_f32 v{dst}, v{ac}, v{ac+1}\nv_cvt_pk_bf16_f32 v{dst+1}, v{ac+2}, v{ac+3}')
    e.auto = P('auto1', 8) if first else 0
    for r in range(4): e(f'v_mov_b32_dpp v{HB+r}, v{HA+r} row_newbcast:0 row_mask:0xf bank_mask:0xf')
    norm(HA, FSR + 8, HB, VW + 8)
    e(f'ds_write_b64 {vT2}, {v(VW + 8, 2)}', 'exw')
    if first: e.wait_lg('csr')
    for h in (0, 1):
        norm(acc1(1, 2+h), FSR + 4, CS + 4*(2+h), KP + h*6 + 4)
        e(f'ds_write_b64 {vT1}, {v(KP + h*6 + 4, 2)} offset:{1024 + 512*h}', 'exw')
    for t in (1, 0):
        for h in (0, 1):
            norm(acc1(t, 4+h), FSR + 4*t, CS + 4*(4+h), VW + (t*2+h)*2)
            e(f'ds_write_b64 {vT0}, {v(VW + (t*2+h)*2, 2)} offset:{1024 + 1024*t + 32*h}', 'exw')
    for h in (0, 1): norm(acc1(0, 2+h), FSR, CS + 4*(2+h), KP + h*6 + 2)
    e('s_waitcnt lgkmcnt(0)\ns_barrier')
    for h in (0, 1): e(f'ds_read_b64 {v(KP + 6*h, 2)}, {vT1} offset:{512*h}', 'exk')
    for h in (0, 1):
        for tt in range(3): e(f'ds_read_b64_tr_b16 {v(VP + 6*h + 2*tt, 2)}, {vT3} offset:{1024*tt + 32*h}', 'exv')
    for p in range(12, 16): q_dma('wo', p, wo_slot(p))
    for t in range(18, 28):
        for kh in (0, 1): e.side.append(lambda t=t, kh=kh: dma('w1', kh*32 + t, pair_of('w1', t)*2 + kh, 'wA'))
    e.auto = P('auto2', 8)
    for t in (1, 0):
        for h in (0, 1): norm(acc1(t, h), FSR + 4*t, CS + 4*h, QP + (t*2+h)*2)
    stamp()
    SP, SCU = 64, 80
    combos = [(1, 0), (1, 1), (0, 0), (0, 1)]
    for n, (t, h) in enumerate(combos):
        q = v(QP + (t*2 + h)*2, 2)
        if n == 2: e.wait_lg('exk')
        e(f'v_mfma_f32_16x16x16_bf16 {v(SCU + 4*n, 4)}, {v(KP + h*6 + 2*(t+1), 2)}, {q}, 0')
        e(f'v_mfma_f32_16x16x16_bf16 {v(SP + 4*n, 4)}, {v(KP + h*6 + 2*t, 2)}, {q}, {v(NEG,4) if t == 0 else "0"}')
    SV = 96
    MX = 104
    for n in range(4):
        for u in range(2):
            e(f'v_cndmask_b32 v{SCU+4*n+2*u}, v{SCU+4*n+2*u}, v{SCU+4*n+2*u+1}, {sPAR}')
            e(f'v_cndmask_b32 v{SP+4*n+2*u}, v{SP+4*n+2*u}, v{SP+4*n+2*u+1}, {sPAR}')
        for u in range(2):
            e(f'v_cndmask_b32 v{SV+2*n+u}, v{SP+4*n+2*u}, v{SCU+4*n+2*u}, {(sCUR0, sCUR1)[u]}')
        e(f'v_max_f32 v{MX+2*n}, v{SV+2*n}, v{SV+2*n+1}')
    e.auto = P('auto2b', 0)
    M0_, M1_, M2_, M3_ = MX, MX+2, MX+4, MX+6
    e(f'v_permlane32_swap_b32 v{M0_}, v{M1_}\nv_permlane32_swap_b32 v{M2_}, v{M3_}')
    e(f'v_max_f32 v{M0_}, v{M0_}, v{M1_}\nv_max_f32 v{M2_}, v{M2_}, v{M3_}')
    e(f'v_permlane16_swap_b32 v{M0_}, v{M2_}\nv_max_f32 v{M0_}, v{M0_}, v{M2_}')
    cexp = 0.25 * math.log2(math.e)
    e(f's_mov_b32 {sC1}, {hx(f2u(cexp))}')
    e(f'v_mul_f32 v{M0_}, {hx(f2u(-cexp))}, v{M0_}')
    e(f'v_mov_b32 v{M2_}, v{M0_}\nv_permlane16_swap_b32 v{M0_}, v{M2_}')
    e(f'v_mov_b32 v{M1_}, v{M0_}\nv_mov_b32 v{M3_}, v{M2_}')
    e(f'v_permlane32_swap_b32 v{M0_}, v{M1_}\nv_permlane32_swap_b32 v{M2_}, v{M3_}')
    PB = 64
    OA = 80
    SMA = 136
    for n in range(4):
        for u in range(2): e(f'v_fma_f32 v{SV+2*n+u}, v{SV+2*n+u}, {sC1}, v{MX+2*n}')
    for n in range(4):
        for u in range(2): e(f'v_exp_f32 v{SV+2*n+u}, v{SV+2*n+u}')
    for n in range(4): e(f'v_cvt_pk_bf16_f32 v{SV+2*n}, v{SV+2*n}, v{SV+2*n+1}')
    e.wait_lg('exv')
    for n, (t, h) in enumerate(combos):
        for i, sel in enumerate((SELP0, SELP1, SELC0, SELC1)):
            e(f'v_perm_b32 v{PB+4*n+i}, v{SV+2*n}, v{SV+2*n}, {sel}')
        if n:
            m, (t2, h2) = n - 1, combos[n-1]
            e(f'v_mfma_f32_16x16x32_bf16 {v(SMA+4*m,4)}, {v(ONES,4)}, {v(PB+4*m,4)}, 0')
            e(f'v_mfma_f32_16x16x32_bf16 {v(OA+4*m,4)}, {v(VP + h2*6 + 2*t2, 4)}, {v(PB+4*m,4)}, 0')
    e(f's_add_u32 {sT0}, {sOB}, {WS_O(l)}\ns_add_u32 {sT1}, {sT0}, 16384')
    e(f'v_mfma_f32_16x16x32_bf16 {v(SMA+12,4)}, {v(ONES,4)}, {v(PB+12,4)}, 0')
    e(f'v_mfma_f32_16x16x32_bf16 {v(OA+12,4)}, {v(VP + 6, 4)}, {v(PB+12,4)}, 0')
    OP = 96
    for n, (t, h) in enumerate(combos):
        e(f'v_rcp_f32 v{SMA+4*n}, v{SMA+4*n}')
        for i in (0, 2): e(f'v_pk_mul_f32 {v(OA+4*n+i,2)}, {v(OA+4*n+i,2)}, {v(SMA+4*n,2)} op_sel_hi:[1,0]')
        d = OP + t*4 + h*2
        e(f'v_cvt_pk_bf16_f32 v{d}, v{OA+4*n}, v{OA+4*n+1}\nv_cvt_pk_bf16_f32 v{d+1}, v{OA+4*n+2}, v{OA+4*n+3}')
        if h == 1:
            hstore(f'buffer_store_dwordx4 {v(OP + t*4, 4)}, {vL16}, {srd(WS)}, {(sT0, sT1)[t]} offen', 'ost', True)
    e.auto = 0
    assert len(e.side) <= 20, len(e.side)
    stamp()
    publish(WS_FLAG(l, 0), f's_lshl_b32 {sT0}, {sTB}, 4\ns_add_u32 {sT0}, {sT0}, {sP}', True, 'ost', P('pre_a', 5))
    for p in range(NWE, 12): dma('wo', p, wo_slot(p), 'pf')
    if first and P('w2lin', 0) == 2: w2_linear()
    if first and RP:
        e(f'v_lshrrev_b32 {vT0}, 3, {vL}\ns_mov_b32 {sT0}, {1792*128}\nv_mul_lo_u32 {vT0}, {vT0}, {sT0}\nv_and_b32 {vT1}, 7, {vL}\nv_lshl_add_u32 {vT0}, {vT1}, 4, {vT0}')
        e(f's_lshl_b32 {sT1}, {sX}, 5\ns_add_u32 {sT1}, {sT1}, {sI}\ns_lshl_b32 {sT1}, {sT1}, 2\ns_add_u32 {sT1}, {sT1}, {sW}\ns_mul_i32 {sT1}, {sT1}, 7')
        for q in range(7):
            e(f's_add_u32 {sT2}, {sT1}, {q}\ns_lshr_b32 {sT4}, {sT2}, 2\ns_lshl_b32 {sT4}, {sT4}, 7\ns_and_b32 {sT2}, {sT2}, 3\ns_mul_i32 {sT2}, {sT2}, {8*1792*128}\ns_add_u32 {sT2}, {sT2}, {sT4}\ns_add_u32 {sT2}, {sT2}, {WS_W2}')
            e(f'buffer_store_dwordx4 {a(112 + 4*q, 4)}, {vT0}, {srd(WS)}, {sT2} offen sc1', 'pf')
    e.drain(P('wa_drain', 2))

def p2_addr():
    e(f'v_lshrrev_b32 {vT0}, 2, {vL}')
    e(f'v_lshrrev_b32 {vT1}, 3, {vL}\nv_and_b32 {vT1}, 3, {vT1}')
    e(f'v_lshlrev_b32 {vT0}, 7, {vT0}\nv_lshl_add_u32 {vT0}, {vT1}, 5, {vT0}')
    e(f'v_and_b32 {vT1}, 3, {vL}\nv_lshl_add_u32 {vT0}, {vT1}, 3, {vT0}')
    for sg in range(4):
        e(f'v_xor_b32 v{vA[sg]}, {32*sg}, {vT0}')
        e(f'v_add_u32 v{vA[4+sg]}, {24*SLOT}, v{vA[sg]}')

def p2_tr(dst, slot, sg, h):
    st = slot // 24
    return f'ds_read_b64_tr_b16 {dst}, v{vA[st*4+sg]} offset:{(slot - st*24)*SLOT + h*2048}'

RS = 144
RH = 136
def phase2(l):
    p2_addr()
    def wreads(p):
        for ct in range(4):
            for h in (0, 1): e(p2_tr(a(16*p + 4*ct + 2*h, 2), wo_slot(p), ct, h), ('f2', p))
    AC = 64
    if l == 0:
        e(f's_lshl_b32 {sT1}, {sW}, 11\ns_add_u32 {sT1}, {sT1}, {SC}\nv_lshlrev_b32 {vT1}, 7, {vJ}\nv_lshl_add_u32 {vT1}, {vG}, 3, {vT1}\nv_add_u32 {vT1}, {sT1}, {vT1}')
        for ct in range(4): e(f'ds_read_b64 {v(CARRY+2*ct, 2)}, {vT1} offset:{32*ct}', 'x0r')
    for p in list(range(NWE)) + list(range(12, 16)): wreads(p)
    if l == 0: e.wait_lg('x0r')
    for ct in range(4):
        e(f'v_lshlrev_b32 v{AC+4*ct}, 16, v{CARRY+2*ct}\nv_and_b32 v{AC+4*ct+1}, 0xffff0000, v{CARRY+2*ct}')
        e(f'v_lshlrev_b32 v{AC+4*ct+2}, 16, v{CARRY+2*ct+1}\nv_and_b32 v{AC+4*ct+3}, 0xffff0000, v{CARRY+2*ct+1}')
    e(f's_lshl_b32 {sXA}, {sSB}, 2\ns_add_u32 {sXA}, {sXA}, {sW}\ns_lshl_b32 {sXB}, {sXA}, 11\ns_add_u32 {sXB}, {sXB}, {WS_STAT(l)}\ns_lshl_b32 {sXH}, {sXA}, 10\ns_lshl_b32 {sXA}, {sXA}, 14\ns_add_u32 {sXA}, {sXA}, {WS_O(l)}')
    poll(WS_FLAG(l, 0), f's_lshr_b32 {sT0}, {sSB}, 1\ns_lshl_b32 {sT0}, {sT0}, 4', 16)
    stamp()
    OF = 128
    for p in range(16):
        if p and p % 4 == 0: e(f's_add_u32 {sXA}, {sXA}, 4096')
        e(f'buffer_load_dwordx4 {v(OF + 4*p, 4)}, {vL16}, {srd(WS)}, {sXA} offen offset:{(p % 4)*1024} sc1', ('o', p))
        if p % 4 == 3: wreads(NWE + p // 4)
    for t in range(28, 32):
        for kh in (0, 1): e.side.append(lambda t=t, kh=kh: dma('w1', kh*32 + t, pair_of('w1', t)*2 + kh, 'wA'))
    e(f's_lshl_b32 {sT1}, {sDT}, 8\ns_add_u32 {sT1}, {sT1}, {sXB}')
    e(f'v_lshrrev_b32 {vP0}, 1, {vG}\nv_lshlrev_b32 {vP0}, 3, {vP0}\nv_lshl_add_u32 {vP0}, {vJ}, 4, {vP0}')
    e(f's_mul_i32 {sT0}, {sW}, {16*RS}\ns_add_u32 {sT0}, {sT0}, {SC}\nv_mul_u32_u24 {vT1}, {RS}, {vJ}\nv_lshl_add_u32 {vT1}, {vG}, 3, {vT1}\nv_add_u32 {vT1}, {sT0}, {vT1}')
    e(f's_mul_i32 {sT0}, {sW}, {16*RH}\ns_add_u32 {sT0}, {sT0}, {P1S}\nv_mul_u32_u24 {vT3}, {RH}, {vJ}\nv_lshl_add_u32 {vT3}, {vG}, 3, {vT3}\nv_add_u32 {vT3}, {sT0}, {vT3}')
    e(f'v_lshrrev_b32 {vT0}, 5, {vL}\nv_lshlrev_b32 {vT0}, 2, {vT0}\nv_lshrrev_b32 {vT2}, 2, {vL}\nv_and_b32 {vT2}, 3, {vT2}\nv_add_u32 {vT0}, {vT0}, {vT2}\nv_mul_u32_u24 {vT0}, {RH}, {vT0}')
    e(f'v_and_b32 {vT2}, 1, {vG}\nv_lshl_add_u32 {vT0}, {vT2}, 5, {vT0}\nv_and_b32 {vT2}, 1, {vL}\nv_lshl_add_u32 {vT0}, {vT2}, 4, {vT0}\nv_and_b32 {vT2}, 2, {vL}\nv_lshl_add_u32 {vT0}, {vT2}, 2, {vT0}\nv_add_u32 {vT0}, {sT0}, {vT0}')
    e(f's_mul_i32 {sT2}, {sKH}, {32*RS}\ns_lshl_b32 {sT0}, {sMH}, 6\ns_add_u32 {sT2}, {sT2}, {sT0}\ns_add_u32 {sT2}, {sT2}, {SC}')
    e(f'v_and_b32 {vT2}, 31, {vL}\nv_mul_u32_u24 {vT2}, {RS}, {vT2}\nv_lshrrev_b32 {vP1}, 5, {vL}\nv_lshl_add_u32 {vT2}, {vP1}, 4, {vT2}\nv_add_u32 {vT2}, {sT2}, {vT2}')
    e(f's_lshl_b32 {sT2}, {sDT}, 18\ns_add_u32 {sT2}, {sT2}, {sXH}\ns_add_u32 {sT2}, {sT2}, {WS_H2(l)}\ns_add_u32 {sXH}, {sT2}, {1 << 17}')
    for p in range(16):
        e.wait_both(('o', p), ('f2', p) if NWE <= p < 12 else None)
        for ct in range(4):
            ac = v(AC + 4*ct, 4)
            e(f'v_mfma_f32_16x16x32_bf16 {ac}, {a(16*p + 4*ct, 4)}, {v(OF + 4*p, 4)}, {ac}')
            if ct == 1 and p >= P('p2x', 2): e.drain(1)
    e.drain()
    stamp()
    S_, Q_ = 96, 98
    e(f'v_pk_add_f32 {v(S_,2)}, {v(AC,2)}, {v(AC+2,2)}\nv_pk_mul_f32 {v(Q_,2)}, {v(AC,2)}, {v(AC,2)}')
    for i in range(2, 16, 2):
        e(f'v_pk_fma_f32 {v(Q_,2)}, {v(AC+i,2)}, {v(AC+i,2)}, {v(Q_,2)}')
        if i >= 4: e(f'v_pk_add_f32 {v(S_,2)}, {v(S_,2)}, {v(AC+i,2)}')
    e(f'v_add_f32 v{S_}, v{S_}, v{S_+1}\nv_add_f32 v{Q_}, v{Q_}, v{Q_+1}')
    e(f'v_permlane32_swap_b32 v{S_}, v{Q_}\nv_add_f32 v{S_}, v{S_}, v{Q_}\nv_mov_b32 v{Q_}, v{S_}\nv_mov_b32 v{S_+1}, {vTAG}')
    e(f'v_permlane16_swap_b32 v{S_}, v{Q_}\nv_add_f32 v{S_}, v{S_}, v{Q_}')
    hstore(f'buffer_store_dwordx2 {v(S_, 2)}, {vP0}, {srd(WS)}, {sT1} offen', 'gran', True)
    XP = 100
    for ct in range(4):
        e(f'v_cvt_pk_bf16_f32 v{XP+2*ct}, v{AC+4*ct}, v{AC+4*ct+1}\nv_cvt_pk_bf16_f32 v{XP+2*ct+1}, v{AC+4*ct+2}, v{AC+4*ct+3}')
        e(f'ds_write_b64 {vT1}, {v(XP+2*ct, 2)} offset:{32*ct}', 'x1w')
    G0 = 108
    gl = [f'buffer_load_dwordx4 {v(G0, 4)}, {vL16}, {srd(WS)}, {sXB} offen sc1', f'buffer_load_dwordx4 {v(G0+4, 4)}, {vL16}, {srd(WS)}, {sXB} offen offset:1024 sc1']
    e.wait_both('wA', 'x1w'); e('s_barrier')
    for t in range(2): e(f'ds_read_b128 {v(CARRY + 4*t, 4)}, {vT2} offset:{32*t}', 'x1r')
    n0_, n1_ = P('npre0', 1), P('npre1', 5)
    preread('w1', 18, 18 + n0_)
    for g_ in gl: e(g_, 'gp')
    preread('w1', 18 + n0_, 18 + n1_)
    spin_check('gp', gl, f'v_xor_b32 v{G0+1}, v{G0+1}, {vTAG}\nv_xor_b32 v{G0+3}, v{G0+3}, {vTAG}\nv_xor_b32 v{G0+5}, v{G0+5}, {vTAG}\nv_xor_b32 v{G0+7}, v{G0+7}, {vTAG}\n'
               f'v_or_b32 v{G0+1}, v{G0+1}, v{G0+3}\nv_or3_b32 v{G0+1}, v{G0+1}, v{G0+5}, v{G0+7}\nv_cmp_ne_u32 vcc, 0, v{G0+1}')
    stamp()
    e(f'v_add_f32 v{S_}, v{G0}, v{G0+4}\nv_add_f32 v{Q_}, v{G0+2}, v{G0+6}')
    e(f'v_permlane32_swap_b32 v{S_}, v{Q_}\nv_add_f32 v{S_}, v{S_}, v{Q_}\nv_mov_b32 v{Q_}, v{S_}')
    e(f'v_permlane16_swap_b32 v{S_}, v{Q_}\nv_add_f32 v{S_}, v{S_}, v{Q_}\nv_mul_f32 v{S_}, {hx(f2u(1/512))}, v{S_}\nv_mov_b32 v{Q_}, v{S_}')
    e(f'v_permlane32_swap_b32 v{S_}, v{Q_}')
    e(f'v_fma_f32 v{Q_}, -v{S_}, v{S_}, v{Q_}\nv_max_f32 v{Q_}, 0, v{Q_}\nv_mov_b32 v{Q_+1}, {hx(f2u(1e-10))}')
    e(f'v_fmac_f32 v{Q_+1}, {hx(f2u(1.0 + 1e-5))}, v{Q_}\nv_rsq_f32 v{S_+1}, v{Q_+1}')
    e(f'v_mul_f32 v{Q_+1}, v{S_}, v{S_+1}')
    for ct in range(4):
        for i in (4*ct, 4*ct+2): e(f'v_pk_fma_f32 {v(AC+i,2)}, {v(AC+i,2)}, {v(S_,2)}, {v(Q_,2)} op_sel:[0,1,1] op_sel_hi:[1,1,1] neg_lo:[0,0,1] neg_hi:[0,0,1]')
        e(f'v_cvt_pk_bf16_f32 v{XP+2*ct}, v{AC+4*ct}, v{AC+4*ct+1}\nv_cvt_pk_bf16_f32 v{XP+2*ct+1}, v{AC+4*ct+2}, v{AC+4*ct+3}')
        e(f'ds_write_b64 {vT3}, {v(XP+2*ct, 2)} offset:{32*ct}', 'h2w')
        if ct % 2:
            db = ct // 2
            for h in range(2): e(f'ds_read_b64_tr_b16 {v(80 + 4*db + 2*h, 2)}, {vT0} offset:{8*h*RH + 64*db}', ('h2r', db))
    for db in range(2):
        e.wait_lg(('h2r', db))
        e(f'buffer_store_dwordx4 {v(80 + 4*db, 4)}, {vL16}, {srd(WS)}, {(sT2, sXH)[db]} offen sc1', 'h2st')
    stamp()
    q_big('w1', 2, 4)
    preread('w1', 18 + n1_, 32, P('pe2', 12))
    publish(WS_FLAG(l, 1), f's_lshl_b32 {sT0}, {sDT}, 5\ns_add_u32 {sT0}, {sT0}, {sSB}', False, 'h2st', 4)

def big_loop(kind, act_base_code, mid_cb, init_cb):
    nt = NT[kind]
    e(act_base_code)
    def areg(t, u): return 128 + (t % 13) * 8 + 4 * u
    def aload(t, u):
        if u == 0 and t and t % 2 == 0: e(f's_add_u32 {sXA}, {sXA}, 4096')
        e(f'buffer_load_dwordx4 {v(areg(t, u), 4)}, {vL16}, {srd(WS)}, {sXA} offen offset:{((t % 2)*2 + u)*1024} sc1', ('act', t, u))
    lead = P('lead', 7)
    for t in range(lead):
        for u in (0, 1): aload(t, u)
    FB = 96
    AC = 64
    NB, DW = 8, P('dw', 6)
    def reads(ph):
        t, f = divmod(ph, 4)
        return [big_tr(v(FB + (ph % NB)*4 + 2*h, 2), pair_of(kind, t), f >> 1, f & 1, h) for h in (0, 1)]
    for ph in range(DW):
        for r in reads(ph): e(r, (kind + 'f', ph))
    init_cb()
    e(f's_lshl_b32 {sT2}, {sW}, 12\ns_add_u32 {sT2}, {sT2}, {SC}\nv_add_u32 {vT0}, {sT2}, {vL16}\nv_xor_b32 {vT1}, 8192, {vT0}')
    for t in range(nt):
        if t == 18:
            e('s_barrier')
            mid_cb()
        for f in ((0, 1, 2, 3) if t < nt - 1 else (1, 3, 0, 2)):
            u, sg = f >> 1, f & 1
            ph = 4*t + f
            e.wait_both(('act', t, u) if sg == (0 if t < nt - 1 else 1) else None, (kind + 'f', ph) if t < 18 else None)
            ac = v(AC + 16*sg, 16)
            W_ = v(FB + (ph % NB)*4, 4) if t < 18 else a(areg_of(kind, t) + 4*f, 4)
            X_ = v(areg(t, u), 4)
            A, B = (W_, X_) if kind == 'w1' else (X_, W_)
            e(f'v_mfma_f32_32x32x16_bf16 {ac}, {A}, {B}, {"0" if t == 0 and u == 0 and sg == 1 else ac}')
            if ph + DW < 72:
                for r in reads(ph + DW): e(r, (kind + 'f', ph + DW))
            if sg == 0:
                if t + lead < nt: aload(t + lead, u)
                else: e.drain(1)
    stamp()
    assert SC % 16384 == 0
    for i in range(4): e(f'ds_write_b128 {vT0}, {v(AC + 16 + 4*i, 4)} offset:{1024*i}', 'xw')
    e('s_waitcnt lgkmcnt(0)\ns_barrier')
    for i in range(4): e(f'ds_read_b128 {v(96 + 4*i, 4)}, {vT1} offset:{1024*i}', ('xr', i))
    e.drain(P('xdrain', 2))

def w2_window():
    q_big('w2', 0, 8)
    preread('w2', 18, 28, P('pe', 5)); e.drain()
    e('s_waitcnt lgkmcnt(0)\ns_barrier')
    q_big('w2', 8, 18); e.drain()

def w2_linear():
    e(f's_lshl_b32 {sT4}, {sX}, 5\ns_add_u32 {sT4}, {sT4}, {sI}\ns_lshl_b32 {sT4}, {sT4}, 2\ns_add_u32 {sT4}, {sT4}, {sW}\ns_mul_i32 {sT4}, {sT4}, 7168')
    e(f'v_lshlrev_b32 {vP0}, 7, {vL}\ns_mov_b32 exec_hi, 0xffffff')
    e(f'buffer_load_dword {vP1}, {vP0}, {srd(W2)}, {sT4} offen', 'pf')
    e('s_mov_b64 exec, -1')

def phase3(l):
    Lskip, Lend = e.label('p3skip'), e.label('p3end')
    if l == 0 and P('w2lin', 0) == 1: w2_linear()
    e(f's_cmp_ge_u32 {sI}, 28\ns_cbranch_scc1 {Lskip}')
    q_big('w1', 0, 2); q_big('w1', 4, 18); e.drain()
    e(f's_lshl_b32 {sT0}, {sKH}, 6\ns_add_u32 {sT0}, {sT0}, {sBW1}\nv_lshrrev_b32 {vT0}, 5, {vL}\nv_lshlrev_b32 {vT0}, 3, {vT0}')
    for b in range(4): e(f'buffer_load_dwordx2 {v(BIAS + 2*b, 2)}, {vT0}, {srd(B1)}, {sT0} offen offset:{16*b}', 'b1')
    poll(WS_FLAG(l, 1), f's_lshl_b32 {sT0}, {sDT3}, 5', 32)
    stamp()
    def mid():
        for t in range(18, 28):
            for kh in (0, 1): e.side.append(lambda t=t, kh=kh: dma('w2', kh*28 + t, pair_of('w2', t)*2 + kh, 'w2A'))
        q_big('w2', 0, 8)
    AC = 64
    k0 = -2.0 * math.sqrt(2.0 / math.pi) * math.log2(math.e)
    def init():
        for b in range(8):
            e(f'v_lshlrev_b32 v{AC+2*b}, 16, v{BIAS+b}\nv_and_b32 v{AC+2*b+1}, 0xffff0000, v{BIAS+b}')
        e(f'v_mov_b32 v{BIAS}, {hx(f2u(k0 * 0.044715))}\nv_mov_b32 v{BIAS+2}, {hx(f2u(k0))}')
        e(f's_lshl_b32 {sT0}, {sDT3}, 1\ns_add_u32 {sT0}, {sT0}, {sMH}\ns_mul_i32 {sT0}, {sT0}, 56\ns_lshl_b32 {sT1}, {sFT}, 1\ns_add_u32 {sT0}, {sT0}, {sT1}\ns_add_u32 {sT0}, {sT0}, {sKH}')
        e(f's_lshl_b32 {sT0}, {sT0}, 11\ns_add_u32 {sT0}, {sT0}, {WS_U(l)}')
    big_loop('w1', f's_lshl_b32 {sXA}, {sDT3}, 1\ns_add_u32 {sXA}, {sXA}, {sMH}\ns_lshl_b32 {sXA}, {sXA}, 1\ns_add_u32 {sXA}, {sXA}, {sKH}\n'
             f's_lshl_b32 {sXA}, {sXA}, 16\ns_add_u32 {sXA}, {sXA}, {WS_H2(l)}', mid, init)
    TT = 80
    UP = 116
    e.auto = P('auto3', 8)
    for m in (0, 1):
        for i in (2*m, 2*m+1):
            e(f's_waitcnt lgkmcnt({3-i})')
            for r in (0, 2): e(f'v_pk_add_f32 {v(AC+4*i+r,2)}, {v(AC+4*i+r,2)}, {v(96+4*i+r,2)}')
        idx = range(8*m, 8*m+8); id2 = range(8*m, 8*m+8, 2)
        for i in id2: e(f'v_pk_mul_f32 {v(TT+i,2)}, {v(AC+i,2)}, {v(AC+i,2)}')
        for i in id2: e(f'v_pk_fma_f32 {v(TT+i,2)}, {v(TT+i,2)}, {v(BIAS,2)}, {v(BIAS+2,2)} op_sel_hi:[1,0,0]')
        for i in id2: e(f'v_pk_mul_f32 {v(TT+i,2)}, {v(TT+i,2)}, {v(AC+i,2)}')
        for i in idx: e(f'v_exp_f32 v{TT+i}, v{TT+i}')
        for i in id2: e(f'v_pk_add_f32 {v(TT+i,2)}, {v(TT+i,2)}, 1.0 op_sel_hi:[1,0]')
        for i in idx: e(f'v_rcp_f32 v{TT+i}, v{TT+i}')
        for i in id2: e(f'v_pk_mul_f32 {v(AC+i,2)}, {v(AC+i,2)}, {v(TT+i,2)}')
        for i in range(4): e(f'v_cvt_pk_bf16_f32 v{UP+4*m+i}, v{AC+8*m+2*i}, v{AC+8*m+2*i+1}')
        if m == 1: e.auto = 0
        e(f'buffer_store_dwordx4 {v(UP+4*m, 4)}, {vL16}, {srd(WS)}, {sT0} offen offset:{1024*m} sc1', 'ust')
    stamp()
    assert len(e.side) <= 16
    e.wait_vm('w2A'); e('s_barrier')
    preread('w2', 18, 28, P('pe', 6))
    publish(WS_FLAG(l, 2), f's_lshl_b32 {sT0}, {sDT3}, 5\ns_add_u32 {sT0}, {sT0}, {sFT}', False, 'ust', 0)
    e.drain()
    e(f's_branch {Lend}')
    e(f'{Lskip}:')
    if RP:
        if l == 0: poll(WS_FLAG(l, 1), f's_lshl_b32 {sT0}, {sDT3}, 5', 32)
        if P('w2warm', 1):
            e(f'v_lshlrev_b32 {vT0}, 7, {vL}')
            e(f's_and_b32 {sT0}, {sI}, 3\ns_lshl_b32 {sT0}, {sT0}, 2\ns_add_u32 {sT0}, {sT0}, {sW}\ns_mul_i32 {sT0}, {sT0}, {3*1792*128//16}\ns_mul_i32 {sT1}, {sX}, {4*1792*128}\ns_add_u32 {sT0}, {sT0}, {sT1}\ns_add_u32 {sT0}, {sT0}, {WS_W2}')
            for q in range(6):
                e(f'buffer_load_dword v{64+q}, {vT0}, {srd(WS)}, {sT0} offen sc1', 'pf')
                e(f's_add_u32 {sT0}, {sT0}, {8192 if q < 4 else 43008 - 5*8192}')
    elif P('w2warm', 1):
        e(f'v_lshlrev_b32 {vT0}, 12, {vL}')
        e(f's_and_b32 {sT0}, {sI}, 3\ns_lshl_b32 {sT1}, {sX}, 2\ns_add_u32 {sT0}, {sT0}, {sT1}\ns_lshl_b32 {sT0}, {sT0}, 7\ns_mul_i32 {sT1}, {sKH}, {896*4096}\ns_add_u32 {sT0}, {sT0}, {sT1}')
        e(f's_lshl_b32 {sT1}, {sMH}, 18\ns_add_u32 {sT0}, {sT0}, {sT1}')
        for q, b in enumerate((4, 5, 6, 0, 1, 2, 3)):
            e(f's_add_u32 {sT1}, {sT0}, {b*128*4096}')
            e(f'buffer_load_dword v{64+q}, {vT0}, {srd(W2)}, {sT1} offen', 'pf')
    e('s_waitcnt vmcnt(0)\ns_barrier')
    if l == 0 and P('sq1', 0):
        e(f's_and_b32 {sT0}, {sI}, 3\ns_lshl_b32 {sT0}, {sT0}, 2\ns_add_u32 {sT0}, {sT0}, {sW}\ns_mul_i32 {sT1}, {sT0}, {96*1024}\ns_add_u32 {sT1}, {sT1}, 384\nv_lshlrev_b32 {vT0}, 10, {vL}')
        e(f'buffer_load_dword v64, {vT0}, {srd(WQKV)}, {sT1} offen\ns_add_u32 {sT1}, {sT1}, {32*1024}', 'pf')
        e(f'buffer_load_dword v65, {vT0}, {srd(WQKV)}, {sT1} offen\ns_lshl_b32 {sT1}, {sT0}, 15\ns_add_u32 {sT1}, {sT1}, 384\ns_mov_b32 exec_hi, 0', 'pf')
        e(f'buffer_load_dword v66, {vT0}, {srd(WO)}, {sT1} offen\ns_mov_b64 exec, -1', 'pf')
    q_big('w2', 18, 28); q_big('w2', 0, 8); e.drain()
    e('s_waitcnt vmcnt(0)\ns_barrier')
    preread('w2', 18, 28)
    e('s_waitcnt lgkmcnt(0)\ns_barrier')
    e(f'{Lend}:')
    q_big('w2', 8, 18); e.drain()

def phase4(l):
    last = l == 1
    e(f's_lshl_b32 {sT0}, {sKH}, 6\ns_add_u32 {sT0}, {sT0}, {sBW2}\nv_and_b32 {vT0}, 31, {vL}\nv_lshlrev_b32 {vT0}, 1, {vT0}')
    e(f'buffer_load_ushort v{BIAS}, {vT0}, {srd(B2)}, {sT0} offen', 'b2')
    if not last and P('sq2', 1):
        e(f's_lshl_b32 {sT4}, {sI}, 2\ns_add_u32 {sT4}, {sT4}, {sW}\ns_mul_i32 {sT0}, {sT4}, {12*1024}\ns_add_u32 {sT0}, {sT0}, 384\nv_lshlrev_b32 {vT1}, 10, {vL}\ns_mov_b64 exec, 0xfff')
        e(f'buffer_load_dword v{BIAS+5}, {vT1}, {srd(WQKV)}, {sT0} offen', 'pf')
        if P('sq2', 1) > 1:
            e(f's_lshl_b32 {sT0}, {sT4}, 12\ns_add_u32 {sT0}, {sT0}, 384\ns_mov_b64 exec, 0xf')
            e(f'buffer_load_dword v{BIAS+6}, {vT1}, {srd(WO)}, {sT0} offen', 'pf')
        e('s_mov_b64 exec, -1')
    if not last and P('pretouch', 1):
        e(f's_lshl_b32 {sT0}, {sSB}, 1\ns_add_u32 {sT0}, {sT0}, {sKH}\ns_lshl_b32 {sT0}, {sT0}, 15')
        e(f's_lshl_b32 {sT1}, {sDT}, 1\ns_add_u32 {sT1}, {sT1}, {sMH}\ns_lshl_b32 {sT1}, {sT1}, 10\ns_add_u32 {sT0}, {sT0}, {sT1}\ns_add_u32 {sT0}, {sT0}, {WS_X2}')
        e(f's_mov_b64 exec, 0xffff\nbuffer_load_dword v{BIAS+1}, v{vA[11]}, {srd(WS)}, {sT0} offen', 'pf')
        e(f's_lshl_b32 {sT0}, {sSB}, 3\ns_add_u32 {sT0}, {sT0}, {sDT}\ns_mul_i32 {sT0}, {sT0}, {FSTR}\ns_add_u32 {sT0}, {sT0}, {WS_FLAG(l, 3)}')
        e(f's_mov_b64 exec, 1\nbuffer_load_dword v{BIAS+3}, v{vA[11]}, {srd(WS)}, {sT0} offen', 'pf')
        e(f's_lshl_b32 {sT0}, {sSB}, 3\ns_add_u32 {sT0}, {sT0}, {sDT}\ns_lshl_b32 {sT0}, {sT0}, 2\ns_add_u32 {sT0}, {sT0}, {sW}\ns_lshl_b32 {sT0}, {sT0}, 8\ns_add_u32 {sT0}, {sT0}, {WS_PS}')
        e(f's_mov_b64 exec, 3\nbuffer_load_dword v{BIAS+4}, v{vA[11]}, {srd(WS)}, {sT0} offen\ns_mov_b64 exec, -1', 'pf')
    poll(WS_FLAG(l, 2), f's_lshl_b32 {sT0}, {sDT}, 5', 28)
    stamp()
    def mid():
        if not last:
            for sl in range(24): q_dma('qkv', sl, sl)
    AC = 64
    def init():
        e(f'v_lshlrev_b32 v{BIAS}, 16, v{BIAS}')
        for i in range(8):
            e(f'v_lshlrev_b32 v{AC+2*i}, 16, v{CARRY+i}\nv_and_b32 v{AC+2*i+1}, 0xffff0000, v{CARRY+i}')
        for i in range(0, 16, 2): e(f'v_pk_add_f32 {v(AC+i,2)}, {v(AC+i,2)}, {v(BIAS,2)} op_sel_hi:[1,0]')
        e(f's_lshl_b32 {sT0}, {sSB}, 1\ns_add_u32 {sT0}, {sT0}, {sKH}\nv_lshrrev_b32 {vT3}, 5, {vL}')
        if last:
            e(f's_lshl_b32 {sT0}, {sT0}, 15\ns_add_u32 {sT0}, {sT0}, {sBWO}\ns_lshl_b32 {sT1}, {sMH}, 6\ns_add_u32 {sT0}, {sT0}, {sT1}')
            e(f'v_and_b32 {vT2}, 31, {vL}\nv_lshlrev_b32 {vT2}, 10, {vT2}\nv_lshl_add_u32 {vT2}, {vT3}, 4, {vT2}')
        else:
            e(f's_lshl_b32 {sT1}, {sDT}, 1\ns_add_u32 {sT1}, {sT1}, {sMH}\ns_lshl_b32 {sXB}, {sT0}, 12\ns_lshl_b32 {sT4}, {sT1}, 3\ns_add_u32 {sXB}, {sXB}, {sT4}\ns_add_u32 {sXB}, {sXB}, {WS_PS}')
            e(f'v_and_b32 v{BIAS+2}, 31, {vL}\nv_lshlrev_b32 v{BIAS+2}, 7, v{BIAS+2}\nv_lshl_add_u32 v{BIAS+2}, {vT3}, 2, v{BIAS+2}')
            e(f's_lshl_b32 {sT0}, {sT0}, 15\ns_lshl_b32 {sT1}, {sT1}, 10\ns_add_u32 {sT0}, {sT0}, {sT1}\ns_add_u32 {sT0}, {sT0}, {WS_X2}')
            e(f'v_and_b32 {vT2}, 1, {vG}\nv_lshlrev_b32 {vT2}, 14, {vT2}\nv_lshl_add_u32 {vT2}, {vT3}, 8, {vT2}\nv_lshl_add_u32 {vT2}, {vJ}, 4, {vT2}')
    big_loop('w2', f's_lshl_b32 {sXA}, {sDT}, 1\ns_add_u32 {sXA}, {sXA}, {sMH}\ns_lshl_b32 {sXA}, {sXA}, 1\ns_add_u32 {sXA}, {sXA}, {sKH}\n'
             f's_mul_i32 {sXA}, {sXA}, {56*1024}\ns_add_u32 {sXA}, {sXA}, {WS_U(l)}', mid, init)
    XP = 80
    for m in range(2):
        for i in (2*m, 2*m+1):
            e(f's_waitcnt lgkmcnt({3-i})')
            for r in (0, 2): e(f'v_pk_add_f32 {v(AC+4*i+r,2)}, {v(AC+4*i+r,2)}, {v(96+4*i+r,2)}')
        for i in range(4): e(f'v_cvt_pk_bf16_f32 v{XP+4*m+i}, v{AC+8*m+2*i}, v{AC+8*m+2*i+1}')
        if last: e(f'buffer_store_dwordx4 {v(XP+4*m, 4)}, {vT2}, {srd(OUTS)}, {sT0} offen offset:{32*m}', 'xst')
        else: hstore(f'buffer_store_dwordx4 {v(XP+4*m, 4)}, {vT2}, {srd(WS)}, {sT0} offen offset:{512*m}', 'xst', True)
    if not last:
        S2, Q2 = 96, 98
        e(f'v_pk_add_f32 {v(S2,2)}, {v(AC,2)}, {v(AC+2,2)}\nv_pk_mul_f32 {v(Q2,2)}, {v(AC,2)}, {v(AC,2)}')
        for i in range(2, 16, 2):
            e(f'v_pk_fma_f32 {v(Q2,2)}, {v(AC+i,2)}, {v(AC+i,2)}, {v(Q2,2)}')
            if i >= 4: e(f'v_pk_add_f32 {v(S2,2)}, {v(S2,2)}, {v(AC+i,2)}')
        e(f'v_add_f32 v{S2}, v{S2}, v{S2+1}\nv_add_f32 v{Q2}, v{Q2}, v{Q2+1}')
        e(f'v_permlane32_swap_b32 v{S2}, v{Q2}\nv_add_f32 v{S2}, v{S2}, v{Q2}')
        hstore(f'buffer_store_dword v{S2}, v{BIAS+2}, {srd(WS)}, {sXB} offen', 'pst', True)
    stamp()
    if last: return
    publish(WS_FLAG(l, 3), f's_lshl_b32 {sT0}, {sSB}, 3\ns_add_u32 {sT0}, {sT0}, {sDT}', True, 'pst', P('pre_d', 5))
    Lh = e.label('hc')
    e(f's_and_b32 {sT0}, {sSB}, {sKH}\ns_and_b32 {sT0}, {sT0}, 1\ns_cmp_eq_u32 {sT0}, 0\ns_cbranch_scc1 {Lh}')
    e(f's_lshr_b32 {sT0}, {sSB}, 1\ns_lshl_b32 {sT0}, {sT0}, 14\ns_add_u32 {sT0}, {sT0}, {sT1}\ns_add_u32 {sT0}, {sT0}, {WS_XH}')
    e('s_mov_b32 exec_lo, 0xffff0000\ns_mov_b32 exec_hi, 0xffff0000')
    for m in range(2):
        e(f'buffer_store_dwordx4 {v(XP+4*m, 4)}, {vT2}, {srd(WS)}, {sT0} offen offset:{512*m} sc1', None); e.vm.pop()
    e(f's_mov_b64 exec, -1\n{Lh}:')
    e(f's_mul_i32 {sT0}, {sKH}, {32*RS}\ns_lshl_b32 {sT1}, {sMH}, 6\ns_add_u32 {sT0}, {sT0}, {sT1}\ns_add_u32 {sT0}, {sT0}, {SC}')
    e(f'v_and_b32 {vT2}, 31, {vL}\nv_mul_u32_u24 {vT2}, {RS}, {vT2}\nv_lshl_add_u32 {vT2}, {vT3}, 4, {vT2}\nv_add_u32 {vT2}, {sT0}, {vT2}')
    for m in range(2): e(f'ds_write_b128 {vT2}, {v(XP+4*m, 4)} offset:{32*m}', 'x2w')
    e(f's_mul_i32 {sT1}, {sW}, {16*RS}\ns_add_u32 {sT1}, {sT1}, {SC}\nv_mul_u32_u24 {vT1}, {RS}, {vJ}\nv_lshl_add_u32 {vT1}, {vG}, 3, {vT1}\nv_add_u32 {vT1}, {sT1}, {vT1}')
    e('s_waitcnt lgkmcnt(0)\ns_barrier')
    for ct in range(4): e(f'ds_read_b64 {v(CARRY+2*ct, 2)}, {vT1} offset:{32*ct}', 'x2r')
    e.drain()
    e('s_waitcnt lgkmcnt(0)\ns_barrier')

def epilogue():
    L = e.label('ep')
    e(f's_or_b32 {sT0}, s2, {sW}\ns_cmp_lg_u32 {sT0}, 0\ns_cbranch_scc1 {L}')
    e(f'v_mov_b32 {vT0}, 0\ns_mov_b64 exec, 1')
    e(f'buffer_store_dword {vTAG}, {vT0}, {srd(WS)}, 0 offen sc1')
    e('s_mov_b64 exec, -1')
    e(f'{L}:')
    if STAMPS:
        stamp(); cstamp(63)
        e(f's_lshl_b32 {sT0}, {sI}, 3\ns_add_u32 {sT0}, {sT0}, {sX}\ns_lshl_b32 {sT0}, {sT0}, 2\ns_add_u32 {sT0}, {sT0}, {sW}\ns_lshl_b32 {sT0}, {sT0}, 8\ns_add_u32 {sT0}, {sT0}, {WS_DBG}')
        e(f'v_lshlrev_b32 {vT0}, 2, {vL}')
        e(f'buffer_store_dword {vSTAMP}, {vT0}, {srd(WS)}, {sT0} offen')
    e('s_endpgm')
    e.raw('L_end:')

prologue()
for l in range(2):
    phase1(l); phase2(l); phase3(l); phase4(l)
assert not e.side
epilogue()

hdr = open('interleave_layers__sliding_local_dilated__mixer_token_mlp__prompt.s.ref').read().split('; Override')[0]
desc = f""".section .rodata,"a"
.p2align 6
.amdhsa_kernel {NAME}
  .amdhsa_next_free_vgpr 512
  .amdhsa_next_free_sgpr 102
  .amdhsa_accum_offset 256
  .amdhsa_group_segment_fixed_size 0
  .amdhsa_kernarg_size 88
  .amdhsa_user_sgpr_count 2
  .amdhsa_user_sgpr_kernarg_segment_ptr 1
  .amdhsa_system_sgpr_workgroup_id_x 1
.end_amdhsa_kernel
"""
open(OUT, 'w').write(hdr + f'; @launch grid=(256,1,1) block=(256,1,1) lds={LDS_BYTES}\n.amdgcn_target "amdgcn-amd-amdhsa--gfx950"\n.text\n' + e.text() + desc)
print('instructions', e.ninstr, 'stamps', nstamp[0])
```
